```python
import torch

def _softmax(x, axis=-1):
    return torch.softmax(x, dim=axis)
def _gelu(x):
    return torch.nn.functional.gelu(x, approximate="tanh")
def _silu(x):
    return torch.nn.functional.silu(x)
def _sigmoid(x):
    return torch.sigmoid(x)
def _layernorm(x, axis=-1, eps=1e-5):
    m = x.mean(dim=axis, keepdim=True)
    v = x.var(dim=axis, keepdim=True, unbiased=False)
    return (x - m) / torch.sqrt(v + eps)
def _scatter_add(tgt, idx, src, axis=0):
    return tgt.clone().index_add_(axis, idx, src)
def _segment_sum(src, seg, n):
    out = torch.zeros((n,) + src.shape[1:], dtype=src.dtype)
    return out.index_add_(0, seg, src)
def _pad(x, pw):
    flat = tuple(v for pair in reversed(pw) for v in pair)
    return torch.nn.functional.pad(x, flat)

kernel_name = 'sequential_preLN__ssm_conv_s4d__swiglu_ffn__prompt'

def setup_inputs():

    _w = (lambda a: (lambda t: t.to(torch.bfloat16) if t.is_floating_point() else t)(torch.as_tensor(a)))
    def _A_setup():
        Bsz, L, D, N = 1, 2048, 512, 128
        return {
            "u": _w((lambda *s: torch.randn(*s, dtype=torch.bfloat16) * 0.05)(Bsz, L, D)),
            "log_A_real": _w((lambda *s: torch.randn(*s, dtype=torch.bfloat16) * 6.4)(D, N) * 0.5),
            "A_imag": _w((lambda *s: torch.randn(*s, dtype=torch.bfloat16) * 0.05)(D, N) * 3.14),
            "C_real": _w((lambda *s: torch.randn(*s, dtype=torch.bfloat16) * 0.05)(D, N) / N ** 0.5),
            "C_imag": _w((lambda *s: torch.randn(*s, dtype=torch.bfloat16) * 0.05)(D, N) / N ** 0.5),
            "log_dt": _w((lambda *s: torch.randn(*s, dtype=torch.bfloat16) * 0.05)(D) * 0.5 - 4.0),
            "D_skip": _w((lambda *s: torch.randn(*s, dtype=torch.bfloat16) * 0.05)(D)),
        }
    _A_in = _A_setup()

    def _B_setup():
        B, S, D, F = 1, 2048, 512, 1792
        return {
            "x": _w((lambda *s: torch.randn(*s, dtype=torch.bfloat16) * 0.05)(B, S, D)),
            "w_gate": _w((lambda *s: torch.randn(*s, dtype=torch.bfloat16) * 0.05)(D, F)),
            "w_up": _w((lambda *s: torch.randn(*s, dtype=torch.bfloat16) * 0.05)(D, F)),
            "w_down": _w((lambda *s: torch.randn(*s, dtype=torch.bfloat16) * 0.05)(F, D)),
        }
    _B_in = _B_setup()

    return {
        "A_u": _A_in["u"],
        "A_log_A_real": _A_in["log_A_real"],
        "A_A_imag": _A_in["A_imag"],
        "A_C_real": _A_in["C_real"],
        "A_C_imag": _A_in["C_imag"],
        "A_log_dt": _A_in["log_dt"],
        "A_D_skip": _A_in["D_skip"],
        "B_x": _B_in["x"],
        "B_w_gate": _B_in["w_gate"],
        "B_w_up": _B_in["w_up"],
        "B_w_down": _B_in["w_down"],
    }

def reference(A_u, A_log_A_real, A_A_imag, A_C_real, A_C_imag, A_log_dt, A_D_skip, B_x, B_w_gate, B_w_up, B_w_down):
    def _A_ref(u, log_A_real, A_imag, C_real, C_imag, log_dt, D_skip):
        L = u.shape[1]
        dt = torch.exp(log_dt)
        A = -torch.exp(log_A_real) + 1j * A_imag
        C = (C_real + 1j * C_imag) * dt[:, None]
        pos = (lambda x, dt: x.to(dt))(torch.arange(L), log_dt.dtype)
        P = torch.exp((A * dt[:, None])[:, :, None] * pos[None, None, :])
        K = 2.0 * torch.einsum("dn,dnl->dl", C, P).real
        L2 = 2 * L
        u_t = (lambda x, *d: x.permute(*d))(u, 0, 2, 1)
        Kf = (lambda x, *a, **k: torch.fft.rfft(x.float(), *a, **k))(K, L2)
        Uf = (lambda x, *a, **k: torch.fft.rfft(x.float(), *a, **k))(u_t, L2)
        y = (lambda x, *a, **k: torch.fft.irfft(x, *a, **k).to(torch.bfloat16))(Uf * Kf[None, :, :], L2)[:, :, :L]
        y = (lambda x, *d: x.permute(*d))(y, 0, 2, 1)
        return y + u * D_skip[None, None, :]

    def _B_ref(x, w_gate, w_up, w_down):
        g = _silu(x @ w_gate)
        u = x @ w_up
        return (g * u) @ w_down

    x = A_u
    h = x + _A_ref(_layernorm(x, axis=-1), A_log_A_real, A_A_imag, A_C_real, A_C_imag, A_log_dt, A_D_skip)
    h2 = h + _B_ref(_layernorm(h, axis=-1), B_w_gate, B_w_up, B_w_down)
    return h2
```

```python
import re

TRANS = ("v_exp_f32", "v_log_f32", "v_rcp_f32", "v_rsq_f32", "v_sqrt_f32", "v_sin_f32", "v_cos_f32",
         "v_rcp_iflag_f32", "v_exp_f16", "v_rcp_f16")

def split_ops(s):
    ops, depth, cur = [], 0, ""
    for ch in s:
        if ch in "[(": depth += 1
        elif ch in "])": depth -= 1
        if ch == "," and depth == 0:
            ops.append(cur.strip()); cur = ""
        else:
            cur += ch
    if cur.strip(): ops.append(cur.strip())
    return ops

REG = re.compile(r"^([vsa])(?:(\d+)|\[(\d+):(\d+)\])$")
def regs_of(tok):
    t = tok.strip()
    t = re.sub(r"^(neg|abs|sext)\((.*)\)$", r"\2", t)
    t = t.lstrip("-").strip("|")
    t = re.sub(r"^(neg|abs|sext)\((.*)\)$", r"\2", t)
    if t == "vcc": return {("s", 106), ("s", 107)}
    if t == "vcc_lo": return {("s", 106)}
    if t == "vcc_hi": return {("s", 107)}
    if t == "exec": return {("s", 126), ("s", 127)}
    if t == "m0": return {("s", 124)}
    m = REG.match(t)
    if not m: return set()
    f = m.group(1)
    if m.group(2) is not None: return {(f, int(m.group(2)))}
    return {(f, i) for i in range(int(m.group(3)), int(m.group(4)) + 1)}

class Ins:
    def __init__(self, text):
        self.text = text
        t = text.split(";")[0].strip()
        parts = t.split(None, 1)
        self.mn = mn = parts[0]
        rest = parts[1] if len(parts) > 1 else ""
        ops = split_ops(rest)
        mods = ""
        if ops:
            last = ops[-1].split(None, 1)
            ops[-1] = last[0]
            mods = last[1] if len(last) > 1 else ""
        self.ops, self.mods = ops, mods
        self.w, self.r = set(), set()
        self.kind = "other"
        self.states = 1
        self.passes = 0
        self.A = self.B = self.C = set()
        self.dpp = bool(re.search(r"row_|quad_perm|wave_", mods))
        self.sdwa = "sdwa" in mn and "dst_sel:DWORD" not in mods
        R = [regs_of(o) for o in ops]
        allr = set().union(*R) if R else set()
        if mn == "s_nop":
            self.kind = "nop"; self.states = int(ops[0], 0) + 1
        elif mn.startswith("v_mfma"):
            self.kind = "mfma"
            self.w = R[0]; self.A, self.B, self.C = R[1], R[2], R[3]
            self.r = R[1] | R[2] | R[3]
            self.passes = 8 if "32x32" in mn else 4
            if mn.endswith("_f32") and ("x2_f32" in mn or "x4_f32" in mn): raise Exception("sgemm not modelled")
        elif mn.startswith("v_"):
            self.kind = "valu"
            base = re.sub(r"_(e32|e64|dpp|sdwa)$", "", mn)
            self.base = base
            if base.startswith("v_permlane") and "swap" in base:
                self.w = R[0] | R[1]; self.r = R[0] | R[1]
            elif base in ("v_add_co_u32", "v_sub_co_u32", "v_subrev_co_u32", "v_addc_co_u32", "v_subb_co_u32", "v_mad_u64_u32", "v_div_scale_f32"):
                self.w = R[0] | R[1]; self.r = set().union(*R[2:])
            elif base == "v_nop":
                pass
            else:
                self.w = R[0]; self.r = set().union(*R[1:]) if len(R) > 1 else set()
                if base in ("v_fmac_f32", "v_dot2c_f32_bf16", "v_pk_fmac_f16", "v_writelane_b32") or self.dpp:
                    self.r |= R[0]
                if base == "v_div_fmas_f32": self.r |= regs_of("vcc")
            self.trans = base in TRANS
        elif mn.startswith("ds_"):
            self.kind = "ds"
            if mn.startswith(("ds_read", "ds_bpermute", "ds_permute", "ds_swizzle")):
                self.w = R[0]; self.r = set().union(*R[1:])
                if "d16" in mn: self.r |= R[0]
            else:
                self.r = allr
        elif mn.startswith(("buffer_", "global_")):
            self.kind = "vmem"
            self.lds = bool(re.search(r"\blds\b", mods)) or "load_lds" in mn
            if "load" in mn and not self.lds:
                self.w = R[0]; self.r = set().union(*R[1:])
            else:
                self.r = allr
                if self.lds: self.r |= regs_of("m0")
            self.widestore = ("store_dwordx4" in mn or "store_dwordx3" in mn)
            if self.widestore:
                self.data = R[0] if mn.startswith("buffer_") else R[1]
        elif mn.startswith("s_"):
            self.kind = "salu"
            if mn.startswith(("s_cmp", "s_cbranch", "s_branch", "s_waitcnt", "s_barrier", "s_endpgm", "s_setprio", "s_sleep", "s_bitcmp")):
                self.r = allr
            else:
                self.w = R[0] if R else set(); self.r = set().union(*R[1:]) if len(R) > 1 else set()
                if "saveexec" in mn: self.w |= regs_of("exec")

def vg(s): return {x for x in s if x[0] in "va"}
def sg(s): return {x for x in s if x[0] == "s"}

def need(P, C):
    n = 0
    if P.kind == "valu":
        pw_v, pw_s = vg(P.w), sg(P.w)
        if C.kind == "mfma" and pw_v & C.r: n = max(n, 2)
        if C.kind == "valu":
            if P.trans and pw_v & C.r: n = max(n, 1)
            if P.sdwa and pw_v & (C.r | C.w): n = max(n, 1)
            if C.dpp and pw_v & C.r: n = max(n, 2)
            if C.base in ("v_readlane_b32", "v_readfirstlane_b32") and pw_v & C.r: n = max(n, 1)
            if C.base.startswith("v_permlane") and pw_v & C.r: n = max(n, 2)
            if pw_s & C.r:
                n = max(n, 4 if C.base in ("v_readlane_b32", "v_writelane_b32", "v_div_fmas_f32") else 2)
        if C.kind == "vmem" and pw_s & C.r: n = max(n, 5)
        if C.kind == "salu" and pw_s & C.r: n = max(n, 1)
        if C.kind in ("ds", "vmem") and P.trans and pw_v & C.r: n = max(n, 1)
    elif P.kind == "mfma":
        p = P.passes
        if C.kind == "mfma":
            if P.w & (C.A | C.B): n = max(n, p + 4)
            if P.w & C.C:
                if not (P.w == C.C and P.passes == C.passes): n = max(n, p + 2)
            elif P.w & C.w: n = max(n, p + 2)
        elif C.kind in ("valu", "ds", "vmem"):
            if P.w & (C.r | C.w): n = max(n, p + 4)
            if C.kind == "valu" and P.C & C.w: n = max(n, p - 1)
    elif P.kind == "salu":
        if ("s", 124) in P.w and C.kind == "vmem" and C.lds: n = max(n, 1)
    elif P.kind == "vmem":
        if getattr(P, "widestore", False) and P.data & C.w:
            n = max(n, 2 if C.kind in ("valu", "mfma") else 1)
    return n

HORIZON = 14

class Asm:
    def __init__(self):
        self.lines = []
        self.nlab = 0
    def __call__(self, text):
        for l in text.strip("\n").split("\n"):
            l = l.strip()
            if l: self.lines.append(l)
    def label(self, name): self.lines.append(name + ":")
    def newlabel(self, p="L"):
        self.nlab += 1
        return f"{p}_{self.nlab}"
    def finish(self):
        snaps = {}
        for it in range(6):
            out, hist, changed = [], [], False
            newsn = {}
            dead = False
            for l in self.lines:
                code = l.split(";")[0].strip()
                if not code or code.startswith("."):
                    out.append(l); continue
                if code.endswith(":"):
                    lab = code[:-1]
                    extra = []
                    for sn in (newsn.get(lab, []) + snaps.get(lab, [])): extra += sn
                    hist = ([] if dead else hist) + extra
                    dead = False
                    out.append(l); continue
                I = Ins(code)
                req = 0
                for P, age in hist:
                    k = need(P, I) - age
                    if k > req: req = k
                while req > 0:
                    k = min(req, 16)
                    out.append(f"s_nop {k-1}")
                    hist = [(P, a + k) for P, a in hist]
                    req -= k
                out.append(l)
                hist = [(P, a + I.states) for P, a in hist if a + I.states < HORIZON]
                if I.kind != "nop": hist.append((I, 0))
                if I.mn.startswith(("s_cbranch", "s_branch")):
                    newsn.setdefault(I.ops[0], []).append(list(hist))
                if I.mn in ("s_branch", "s_endpgm"): dead = True
            key = lambda d: {k: [[(P.text, a) for P, a in sn] for sn in v] for k, v in d.items()}
            if key(newsn) == key(snaps): break
            snaps = newsn
        res = []
        for l in out:
            c = l.split(";")[0].strip()
            res.append(l if (c.endswith(":") or c.startswith(".")) else "    " + l)
        return "\n".join(res) + "\n"

def v(a, n=1): return f"v{a}" if n == 1 else f"v[{a}:{a+n-1}]"
def s(a, n=1): return f"s{a}" if n == 1 else f"s[{a}:{a+n-1}]"
import struct
def f2u(x): return struct.unpack("<I", struct.pack("<f", x))[0]
def hx(x): return f"0x{x & 0xffffffff:x}"
```

```python
from asmlib import *
import numpy as np
XT   = 0x0000000
UT   = 0x0200000
KG   = 0x0400000
HT   = 0x0800000
ACT  = 0x0A00000
KSC  = 0x1100000
CSUM = 0x1120000
FLG  = 0x1104000
AFL  = 0x1140000
INB  = 0x0000000
PARG = 0x1108000
KTAB = KG
L2E = 1.4426950408889634
L2E_HI = float(np.float32(L2E)); L2E_LO = float(np.float32(L2E - L2E_HI))
I2P = 0.15915494309189535
I2P_HI = float(np.float32(I2P)); I2P_LO = float(np.float32(I2P - I2P_HI))
LN2 = 0.6931471805599453

def kernel_head(A, name):
    A(f".globl {name}\n.p2align 8\n.type {name},@function")
    A.label(name)

def kernel_desc(name, vgpr, sgpr=100):
    acc = (vgpr + 3) // 4 * 4
    acc = min(acc, 256)
    return f""".p2align 6
.amdhsa_kernel {name}
  .amdhsa_next_free_vgpr {vgpr}
  .amdhsa_next_free_sgpr {sgpr}
  .amdhsa_accum_offset {acc}
  .amdhsa_group_segment_fixed_size 0
  .amdhsa_kernarg_size 112
  .amdhsa_user_sgpr_count 2
  .amdhsa_user_sgpr_kernarg_segment_ptr 1
  .amdhsa_system_sgpr_workgroup_id_x 1
.end_amdhsa_kernel
"""

def addr64(A, d, base, off):
    o = hx(off) if isinstance(off, int) else off
    A(f"s_add_u32 s{d}, s{base}, {o}")
    A(f"s_addc_u32 s{d+1}, s{base+1}, 0")

def srd(A, d, base, off, nbytes):
    if off == 0:
        A(f"s_mov_b32 s{d}, s{base}\ns_mov_b32 s{d+1}, s{base+1}")
    else:
        addr64(A, d, base, off)
    A(f"s_mov_b32 s{d+2}, {hx(nbytes)}\ns_mov_b32 s{d+3}, 0x20000")

def dpp_reduce(A, op, regs):
    for m in ["row_shr:1 row_mask:0xf", "row_shr:2 row_mask:0xf", "row_shr:4 row_mask:0xf", "row_shr:8 row_mask:0xf",
              "row_bcast:15 row_mask:0xa", "row_bcast:31 row_mask:0xc"]:
        for r in regs:
            A(f"{op}_dpp v{r}, v{r}, v{r} {m} bank_mask:0xf")

import os
STAMP = int(os.environ.get("STAMP", "0"))
STAMP_OFF = 0x2000000
_st = {"n": 0}
def stamp_reset(): _st["n"] = 0
def stamp(A):
    if not STAMP: return
    n = _st["n"]; _st["n"] += 1
    assert n < 30
    A(f"s_memtime s[98:99]\ns_waitcnt lgkmcnt(0)\ns_mov_b32 s{64+n}, s98")
def stamp_rt(A):
    if not STAMP: return
    n = _st["n"]; _st["n"] += 1
    A(f"s_memrealtime s[98:99]\ns_waitcnt lgkmcnt(0)\ns_mov_b32 s{64+n}, s98")
def stamp_flush(A, kidx, wsreg=16, wave="s20", n=None):
    if not STAMP: return
    n = _st["n"] if n is None else n
    A(f"""
    s_lshl_b32 s96, s2, 3
    s_add_u32 s96, s96, {wave}
    s_lshl_b32 s96, s96, 7
    s_add_u32 s96, s96, {hx(STAMP_OFF + kidx * 0x100000)}
    s_add_u32 s96, s{wsreg}, s96
    s_addc_u32 s97, s{wsreg+1}, 0
    s_mov_b64 exec, 1
    v_mov_b32 v0, 0
    """)
    for i in range(n):
        A(f"v_mov_b32 v1, s{64+i}\nglobal_store_dword v0, v1, s[96:97] offset:{4*i}")

NKERN = 3
DIAG = int(os.environ.get("DIAG", "0"))
def diag_start(A):
    if not DIAG: return
    A("s_memrealtime s[94:95]\ns_load_dwordx2 s[92:93], s[0:1], 96")
def diag_end(A, kidx, wg, slot):
    if not DIAG: return
    l = A.newlabel("DG")
    A(f"""
    s_cmp_lg_u32 s2, {wg}
    s_cbranch_scc1 {l}
    s_cmp_lg_u32 s20, 0
    s_cbranch_scc1 {l}
    s_waitcnt vmcnt(0) lgkmcnt(0)
    s_memrealtime s[90:91]
    s_add_u32 s92, s92, {512*(NKERN-1-kidx)}
    s_addc_u32 s93, s93, 0
    s_waitcnt lgkmcnt(0)
    s_mov_b64 exec, 1
    v_mov_b32 v0, 0
    v_mov_b32 v2, s94
    v_mov_b32 v3, s90
    global_store_dwordx2 v0, v[2:3], s[92:93] offset:{16*kidx+8*slot}
    """)
    A.label(l)

PREF = int(os.environ.get("PREF", "14"))
P2MAP = int(os.environ.get("P2MAP", "1"))

DIAG2 = int(os.environ.get("DIAG2", "0"))
def d2(A, word, dbg, off, vt):
    if not DIAG2: return
    A(f"""
    s_memrealtime s[90:91]
    s_waitcnt lgkmcnt(0)
    s_mov_b64 s[88:89], exec
    s_mov_b64 exec, 1
    v_mov_b32 v{vt}, 0
    v_mov_b32 v{vt+1}, s90
    global_atomic_umax v{vt}, v{vt+1}, s[{dbg}:{dbg+1}] offset:{off + 4*word}
    s_mov_b64 exec, s[88:89]
    """)
def d2flush(A, words, dbg, off):
    if not DIAG2: return
    A("s_mov_b64 exec, 1\nv_mov_b32 v0, 0")
    for w in words:
        A(f"v_mov_b32 v1, s{70+w}\nglobal_atomic_umax v0, v1, s[{dbg}:{dbg+1}] offset:{off + 4*w}")
```

```python
from common import *

PITCH = 544
BOFF = 41 * PITCH
CHSZ = BOFF + 16 * PITCH
CVB = 2 * CHSZ
CP = 4160
UOFF = 4 * CP
XOFF = UOFF + 4608 + 64
TOFF = XOFF + 4096 + 16
CH2 = (TOFF + 1536 + 127) // 128 * 128 + 32
LNB = CVB + 2 * CH2
CNT = LNB + 128
CSP = CNT + 64
SHF = CSP + 8192
K12_LDS = SHF + 16384
LFL = 0x1106000
WS, DBG = 54, 52

def arrive(A, areg, off):
    A(f"s_mov_b64 exec, 1\nds_add_u32 v{areg}, v{areg+1} offset:{off}\ns_mov_b64 exec, -1")
def await_(A, areg, off, n, tmp):
    l = A.newlabel("SY")
    A.label(l)
    A(f"""
    ds_read_b32 v{tmp}, v{areg} offset:{off}
    s_waitcnt lgkmcnt(0)
    v_cmp_gt_u32 vcc, {n}, v{tmp}
    s_cbranch_vccnz {l}
    """)

def k12(A):
    kernel_head(A, "k12_kernel")
    diag_start(A)
    A(f"""
    s_load_dwordx16 s[4:19], s[0:1], 0
    s_load_dwordx8 s[44:51], s[0:1], 64
    s_load_dwordx4 s[52:55], s[0:1], 96
    s_memrealtime s[56:57]
    v_lshrrev_b32 v1, 6, v0
    v_readfirstlane_b32 s20, v1
    v_and_b32 v1, 63, v0
    s_cmp_ge_u32 s2, 256
    s_cbranch_scc1 K12_END
    v_lshlrev_b32 v2, 4, v1
    v_mov_b32 v8, 0
    v_mov_b32 v9, 0
    v_mov_b32 v10, 0
    v_mov_b32 v11, 0
    s_mov_b32 s36, 0xffff0000
    """)
    if CODET:
        A(f"""
        s_getpc_b64 s[62:63]
        s_and_b32 s62, s62, 0xffffff00
        s_lshr_b32 s60, s2, 3
        s_lshl_b32 s60, s60, 3
        s_add_u32 s60, s60, s20
        s_lshl_b32 s60, s60, 8
        v_and_b32 v250, 1, v0
        v_lshl_add_u32 v250, v250, 7, s60
        v_min_u32 v250, K3_RT27-k12_kernel, v250
        global_load_dword v251, v250, s[62:63]
        """)
    A("""
    s_cmp_ge_u32 s20, 4
    s_cbranch_scc1 K12_LN
    """)
    stamp_reset(); stamp_rt(A); stamp(A)
    LA_, AI_, CR_, CI_, LD_ = 200, 201, 202, 203, 204
    A(f"""
    s_lshr_b32 s21, s20, 1
    s_and_b32 s22, s20, 1
    s_lshl_b32 s23, s2, 1
    s_add_u32 s23, s23, s21
    s_lshl_b32 s24, s23, 8
    v_lshl_add_u32 v6, v1, 2, s24
    s_lshl_b32 s26, s23, 1
    v_mov_b32 v7, s26
    s_mul_i32 s25, s21, {CHSZ}
    s_mul_i32 s27, s21, {CH2}
    s_add_u32 s27, s27, {CVB}
    v_and_b32 v3, 15, v1
    v_lshrrev_b32 v4, 4, v1
    s_waitcnt lgkmcnt(0)
    global_load_dword v{LA_}, v6, s[6:7]
    global_load_ushort v{LD_}, v7, s[14:15]
    global_load_dword v{AI_}, v6, s[8:9]
    global_load_dword v{CR_}, v6, s[10:11]
    global_load_dword v{CI_}, v6, s[12:13]
    global_load_ushort v20, v7, s[16:17]
    """)
    if TLBT:
        sh = {1: 21, 2: 18}[TLBT]
        A(f"""
        v_min_u32 v205, {(0x1160000 >> sh) if TLBT == 1 else 63}, v1
        s_lshl_b32 s26, s20, {sh + 6}
        v_lshl_add_u32 v205, v205, {sh}, {'0' if TLBT == 1 else 's26'}
        v_min_u32 v205, 0x1160000, v205
        v_min_u32 v206, 6, v1
        v_lshlrev_b32 v206, 18, v206
        global_load_dword v207, v205, s[{WS}:{WS+1}]
        global_load_dword v207, v206, s[44:45]
        global_load_dword v207, v206, s[46:47]
        global_load_dword v207, v206, s[48:49]
        global_load_dword v207, v206, s[50:51]
        """)
    A(f"""
    s_barrier
    s_mov_b32 s32, {hx(f2u(L2E_HI))}
    s_mov_b32 s33, {hx(f2u(L2E_LO))}
    s_mov_b32 s34, {hx(f2u(I2P_HI))}
    s_mov_b32 s35, {hx(f2u(I2P_LO))}
    v_lshl_add_u32 v26, v1, 3, s25
    v_mul_u32_u24 v27, {PITCH}, v3
    v_lshl_add_u32 v27, v4, 4, v27
    v_add_u32 v27, s25, v27
    s_lshl_b32 s26, s21, 4
    s_add_u32 s26, s26, {CNT}
    v_mov_b32 v18, s26
    v_mov_b32 v19, 1
    s_add_u32 s28, s27, {TOFF}
    """)
    A(f"""
    s_mul_i32 s29, s22, {CP}
    s_add_u32 s29, s29, s27
    s_lshl_b32 s37, s22, 8
    s_add_u32 s37, s37, s27
    s_add_u32 s37, s37, {UOFF}
    v_add_u32 v6, s37, v2
    s_add_u32 s38, s29, {4096 - 256}
    v_add_u32 v7, s38, v2
    v_cmp_lt_u32 vcc, 15, v1
    v_cndmask_b32 v6, v6, v7, vcc
    v_add_u32 v7, {2*CP - 64}, v7
    v_cmp_lt_u32 vcc, 19, v1
    v_cndmask_b32 v6, v6, v7, vcc
    s_sub_u32 s38, s28, 16
    v_mov_b32 v7, s38
    v_cmp_lt_u32 vcc, 23, v1
    v_cndmask_b32 v6, v6, v7, vcc
    s_mov_b64 exec, 0x1ffffff
    ds_write_b128 v6, v[8:11]
    s_mov_b64 exec, -1
    """)
    AD = 176
    A(f"""
    s_add_u32 s39, s28, {hx(-0x96800000)}
    v_lshlrev_b32 v30, 3, v1
    s_lshl_b32 s38, s22, 10
    """)
    for rnd in range(2):
        A(f"s_sub_u32 s37, {2047 - 512 * rnd}, s38")
        A("v_sub_u32 v31, s37, v30")
        for part in range(2):
            if part == 1: A("v_add_u32 v31, -8, v31\nv_max_i32 v32, 1, v31\nv_ffbh_u32 v32, v32")
            else: A("v_ffbh_u32 v32, v31")
            A("""
            v_sub_u32 v32, 24, v32
            v_max_i32 v32, 0, v32
            v_sub_u32 v33, 127, v32
            v_lshlrev_b32 v33, 23, v33
            v_cvt_f32_i32 v34, v31
            v_mul_f32 v34, v34, v33
            v_lshlrev_b32 v35, 7, v32
            v_add_u32 v35, 0x4b400000, v35
            """)
            es = list(range(8)) if part == 0 else [8, 9, 10]
            for e in es:
                A("v_add_f32 v36, v34, v35")
                A(f"v_lshl_add_u32 v{AD + 11 * rnd + e}, v36, 1, s39")
                if e != es[-1]: A("v_sub_f32 v34, v34, v33")
    A(f"""
    s_lshl_b32 s30, s22, 11
    s_add_u32 s37, s30, s27
    v_add_u32 v21, s37, v2
    v_lshlrev_b32 v5, 5, v3
    v_lshl_add_u32 v5, v4, 3, v5
    s_add_u32 s37, s37, {UOFF + 512}
    v_add_u32 v15, s37, v5
    s_lshl_b32 s37, s22, 6
    s_sub_u32 s38, s27, s37
    s_add_u32 s39, s38, {UOFF + 512 - 13*32}
    v_lshlrev_b32 v12, 5, v3
    v_lshl_add_u32 v12, v4, 4, v12
    v_add_u32 v12, s39, v12
    v_sub_u32 v13, 47, v3
    v_lshl_add_u32 v13, v4, 3, v13
    v_and_b32 v14, 3, v13
    v_and_b32 v13, -4, v13
    v_lshlrev_b32 v13, 1, v13
    v_mul_u32_u24 v14, {CP}, v14
    v_add3_u32 v13, v13, v14, s38
    s_lshl_b32 s37, s22, 12
    s_add_u32 s37, s37, s25
    v_add_u32 v16, s37, v2
    s_xor_b32 s37, s22, 1
    s_lshl_b32 s37, s37, 12
    s_add_u32 s37, s37, s25
    v_add_u32 v17, s37, v2
    s_lshl_b32 s37, s23, 12
    s_add_u32 s37, s37, s30
    s_add_u32 s37, s37, {hx(HT)}
    """)
    addr64(A, 40, WS, "s37")
    stamp(A)
    A(f"""
    s_waitcnt vmcnt({(5 if TLBT else 0)})
    v_lshlrev_b32 v42, 16, v{LD_}
    v_lshlrev_b32 v40, 16, v{LA_}
    v_and_b32 v41, s36, v{LA_}
    v_lshlrev_b32 v20, 16, v20
    """)
    stamp(A)
    for i in range(3): A(f"v_mul_f32 v{43+i}, s32, v{40+i}")
    for i in range(3): A(f"v_fma_f32 v{49+i}, v{40+i}, s32, -v{43+i}")
    for i in range(3): A(f"v_exp_f32 v{46+i}, v{43+i}")
    for i in range(3): A(f"v_fma_f32 v{49+i}, v{40+i}, s33, v{49+i}")
    for i in range(3): A(f"v_mul_f32 v{49+i}, {hx(f2u(LN2))}, v{49+i}")
    for i in range(3): A(f"v_fma_f32 v{46+i}, v{46+i}, v{49+i}, v{46+i}")
    A(f"""
    v_and_b32 v52, 0x7fff7fff, v{CR_}
    v_and_b32 v53, 0x7fff7fff, v{CI_}
    v_pk_max_u16 v52, v52, v53
    v_lshrrev_b32 v53, 16, v52
    v_and_b32 v52, 0xffff, v52
    v_max_u32 v52, v52, v53
    v_cvt_pk_bf16_f32 v43, v46, v47
    v_cvt_pk_bf16_f32 v44, v48, v48
    """)
    fill = [f"v_lshlrev_b32 v48, 16, v44", "v_lshlrev_b32 v46, 16, v43", "v_and_b32 v47, s36, v43",
            f"v_lshlrev_b32 v40, 16, v{AI_}", f"v_and_b32 v41, s36, v{AI_}",
            "v_mul_f32 v46, v46, v48", "v_mul_f32 v47, v47, v48", "v_mul_f32 v40, v40, v48", "v_mul_f32 v41, v41, v48",
            "v_mul_f32 v56, s32, v46", "v_mul_f32 v57, s32, v47", "v_mul_f32 v58, s34, v40"]
    for m in ["row_shr:1 row_mask:0xf", "row_shr:2 row_mask:0xf", "row_shr:4 row_mask:0xf", "row_shr:8 row_mask:0xf",
              "row_bcast:15 row_mask:0xa", "row_bcast:31 row_mask:0xc"]:
        A(f"v_max_u32_dpp v52, v52, v52 {m} bank_mask:0xf")
        A(fill.pop(0)); A(fill.pop(0))
    A(f"""
    v_readlane_b32 s30, v52, 63
    v_mul_f32 v59, s34, v41
    v_fma_f32 v60, v40, s34, -v58
    v_fma_f32 v61, v41, s34, -v59
    s_lshr_b32 s30, s30, 7
    s_max_u32 s30, s30, 8
    s_min_u32 s30, s30, 250
    s_sub_u32 s31, 260, s30
    s_lshl_b32 s31, s31, 23
    s_sub_u32 s30, s30, 5
    s_lshl_b32 s30, s30, 23
    v_fma_f32 v60, v40, s35, v60
    v_fma_f32 v61, v41, s35, v61
    v_lshlrev_b32 v64, 16, v{CR_}
    v_and_b32 v65, s36, v{CR_}
    v_lshlrev_b32 v66, 16, v{CI_}
    v_and_b32 v67, s36, v{CI_}
    v_mul_f32 v64, s31, v64
    v_mul_f32 v65, s31, v65
    v_mul_f32 v66, s31, v66
    v_mul_f32 v67, s31, v67
    v_mul_f32 v22, s30, v48
    """)
    def direct(dst, p):
        P = hx(f2u(float(p))); NP = hx(f2u(-float(p)))
        for m in range(2):
            A(f"v_mul_f32 v{43+m}, {NP}, v{56+m}")
            A(f"v_mul_f32 v{45+m}, {P}, v{58+m}")
        for m in range(2):
            A(f"v_exp_f32 v{43+m}, v{43+m}")
            A(f"v_fract_f32 v{45+m}, v{45+m}")
        for m in range(2): A(f"v_fmac_f32 v{45+m}, {P}, v{60+m}")
        for m in range(2):
            A(f"v_cos_f32 v{dst+m}, v{45+m}")
            A(f"v_sin_f32 v{dst+2+m}, v{45+m}")
        for m in range(2):
            A(f"v_mul_f32 v{dst+m}, v{dst+m}, v{43+m}")
            A(f"v_mul_f32 v{dst+2+m}, v{dst+2+m}, v{43+m}")
    tmpc = [0]
    def cmul(d, a, b):
        t = 92 + 4 * (tmpc[0] % 3); tmpc[0] += 1
        A(f"v_pk_mul_f32 {v(t,2)}, {v(a+2,2)}, {v(b+2,2)}")
        A(f"v_pk_mul_f32 {v(t+2,2)}, {v(a+2,2)}, {v(b,2)}")
        A(f"v_pk_fma_f32 {v(d+2,2)}, {v(a,2)}, {v(b+2,2)}, {v(t+2,2)}")
        A(f"v_pk_fma_f32 {v(d,2)}, {v(a,2)}, {v(b,2)}, {v(t,2)} neg_lo:[0,0,1] neg_hi:[0,0,1]")
    emc = [0]
    def emit(src, off, negim):
        c = 104 + 2 * (emc[0] % 4); emc[0] += 1
        n = "-" if negim else ""
        A(f"v_cvt_pk_f16_f32 v{c}, v{src}, v{src+1}")
        A(f"v_cvt_pk_f16_f32 v{c+1}, {n}v{src+2}, {n}v{src+3}")
        A(f"ds_write_b64 v26, {v(c,2)} offset:{off}")
    EA, EB, EC = 68, 72, 76
    P_, Z_ = 80, 84
    X_ = 64
    stamp(A)
    A("s_cmp_eq_u32 s22, 1\ns_cbranch_scc1 K12_H1")
    direct(EA, 8); direct(EB, 1); direct(EC, 128)
    A("v_mov_b32 v104, 0x3c003c00\nv_mov_b32 v105, 0")
    A(f"ds_write_b64 v26, v[104:105] offset:{BOFF}")
    emc[0] = 1
    emit(EA, BOFF + PITCH, False)
    emit(X_, 0, True)
    cmul(Z_, X_, EC); emit(Z_, 8 * PITCH, True)
    j = 2
    for k in range(1, 8):
        cmul(P_, P_ if j > 2 else EA, EA)
        cmul(X_, X_, EB)
        emit(P_, BOFF + j * PITCH, False); j += 1
        emit(X_, k * PITCH, True)
        cmul(P_, P_, EA)
        cmul(Z_, X_, EC)
        emit(P_, BOFF + j * PITCH, False); j += 1
        emit(Z_, (8 + k) * PITCH, True)
    A("s_branch K12_TAB")
    A.label("K12_H1")
    direct(EC, 128); direct(EA, 2); direct(EB, 4)
    Y = X_
    cmul(Y, Y, EC)
    cmul(Y, Y, EC); emit(Y, 16 * PITCH, True)
    cmul(P_, Y, EA)
    cmul(Y, Y, EC)
    emit(P_, 17 * PITCH, True); emit(Y, 20 * PITCH, True)
    cmul(P_, P_, EA); cmul(Z_, Y, EA); cmul(Y, Y, EC)
    emit(P_, 18 * PITCH, True); emit(Z_, 21 * PITCH, True); emit(Y, 24 * PITCH, True)
    cmul(P_, P_, EA); cmul(Z_, Z_, EA)
    emit(P_, 19 * PITCH, True); emit(Z_, 22 * PITCH, True)
    cmul(P_, Y, EB); cmul(Z_, Z_, EA); cmul(Y, Y, EC)
    emit(P_, 25 * PITCH, True); emit(Z_, 23 * PITCH, True); emit(Y, 26 * PITCH, True)
    for i in (5, 6, 7):
        cmul(P_, Y, EB); cmul(Y, Y, EC)
        emit(P_, (24 + 2 * (i - 4) + 1) * PITCH, True)
        emit(Y, (24 + 2 * (i + 1 - 4)) * PITCH, True)
    for i in range(9, 17):
        cmul(Y, Y, EC); emit(Y, (32 + i - 8) * PITCH, True)
    A.label("K12_TAB")
    arrive(A, 18, 0)
    stamp(A)
    await_(A, 18, 0, 2, 40)
    stamp(A)
    for ks in range(8): A(f"ds_read_b128 {v(64+4*ks,4)}, v27 offset:{BOFF + 64*ks}")
    A("s_cmp_eq_u32 s22, 0\ns_cbranch_scc1 K12_T2")
    for ks in range(8): A(f"ds_read_b128 {v(96+4*ks,4)}, v27 offset:{64*ks}")
    for ks in range(8): A(f"ds_read_b128 {v(128+4*ks,4)}, v27 offset:{16*PITCH + 64*ks}")
    A(f"""
    v_lshrrev_b32 v32, 1, v4
    v_and_b32 v33, 1, v4
    v_lshlrev_b32 v34, 8, v32
    v_lshl_add_u32 v34, v33, 3, v34
    v_lshl_add_u32 v34, v3, 4, v34
    v_add_u32 v34, s28, v34
    v_sub_u32 v35, 3, v32
    v_lshlrev_b32 v35, v35, v3
    v_lshl_add_u32 v35, v4, 7, v35
    v_add_u32 v35, s28, v35
    v_mul_u32_u24 v36, 60, v32
    v_add3_u32 v36, v35, v36, 4
    """)
    A("s_waitcnt lgkmcnt(8)")
    for ks in range(8):
        A(f"v_mfma_f32_16x16x32_f16 v[40:43], {v(96+4*ks,4)}, {v(64+4*ks,4)}, {'0' if ks == 0 else 'v[40:43]'}")
    A("s_waitcnt lgkmcnt(0)")
    for ks in range(8):
        A(f"v_mfma_f32_16x16x32_f16 v[44:47], {v(128+4*ks,4)}, {v(64+4*ks,4)}, {'0' if ks == 0 else 'v[44:47]'}")
    A(f"""
    v_cvt_pk_f16_f32 v48, v40, v41
    v_cvt_pk_f16_f32 v49, v42, v43
    ds_write_b64 v34, v[48:49]
    v_cvt_pk_f16_f32 v50, v44, v45
    v_cvt_pk_f16_f32 v51, v46, v47
    ds_write_b32 v35, v50 offset:512
    ds_write_b32 v36, v51 offset:512
    s_branch K12_EXP
    """)
    A.label("K12_T2")
    for ks in range(8): A(f"ds_read_b128 {v(96+4*ks,4)}, v27 offset:{32*PITCH + 64*ks}")
    A(f"""
    v_lshlrev_b32 v34, 7, v4
    v_lshl_add_u32 v34, v3, 1, v34
    v_add_u32 v34, s28, v34
    s_waitcnt lgkmcnt(0)
    """)
    for ks in range(8):
        A(f"v_mfma_f32_16x16x32_f16 v[40:43], {v(96+4*ks,4)}, {v(64+4*ks,4)}, {'0' if ks == 0 else 'v[40:43]'}")
    A(f"""
    v_cvt_pk_f16_f32 v48, v40, v41
    v_cvt_pk_f16_f32 v49, v42, v43
    ds_write_b16 v34, v48 offset:1024
    ds_write_b16_d16_hi v34, v48 offset:1056
    ds_write_b16 v34, v49 offset:1088
    ds_write_b16_d16_hi v34, v49 offset:1120
    """)
    A.label("K12_EXP")
    arrive(A, 18, 4)
    await_(A, 18, 4, 2, 40)
    stamp(A)
    E = 112; PK = 136
    for rnd in range(2):
        for e in range(11): A(f"ds_read_u16 v{E + 12*rnd + e}, v{AD + 11*rnd + e}")
    for rnd in range(2):
        A(f"s_waitcnt lgkmcnt({11 if rnd == 0 else 4})")
        for s_ in range(4):
            d = PK + 16 * rnd + 4 * s_
            for k in range(4):
                A(f"v_lshl_or_b32 v{d+k}, v{E+12*rnd+s_+2*k+1}, 16, v{E+12*rnd+s_+2*k}")
            A(f"ds_write_b128 v21, {v(d,4)} offset:{s_*CP + 1024*rnd}")
    A("s_waitcnt lgkmcnt(0)")
    stamp(A)
    if DIAG2: A("s_memrealtime s[90:91]\ns_waitcnt lgkmcnt(0)\ns_mov_b32 s76, s90")
    A("s_barrier")
    stamp(A)
    ACC = 24; AF = 56; BF = 88; UU = 216; W = 240; T = 224; X = 232
    def group_reads(g):
        L = []
        for ii in range(4):
            k = 4 * (7 - g) + 3 - ii
            L.append(("B", k)); L.append(("A0", 4*g+ii)); L.append(("A1", 4*g+ii))
        return L
    def do_read(x):
        kind, i = x
        if kind == "B": A(f"ds_read_b128 {v(BF+4*i,4)}, v12 offset:{128*i}")
        elif kind == "U": A(f"ds_read_b64 {v(UU+2*i,2)}, v15 offset:{512*i}")
        elif kind == "X": A(f"ds_read_b64 {v(X+2*i,2)}, v15 offset:{XOFF - UOFF - 512 + 512*i}")
        else:
            a = AF + 4 * (i % 8); h = 0 if kind == "A0" else 1
            A(f"ds_read_b64 {v(a+2*h,2)}, v13 offset:{(31-i)*128+8*h}")
    for x in group_reads(7): do_read(x)
    started = set()
    filler = []
    for t in range(4):
        for h in range(2):
            u = UU + 2 * t + h
            filler += [f"v_cvt_f32_f16 v{T}, v{u}",
                       f"v_cvt_f32_f16_sdwa v{T+1}, v{u} dst_sel:DWORD dst_unused:UNUSED_PAD src0_sel:WORD_1",
                       f"v_mul_f32 v{T}, v20, v{T}", f"v_mul_f32 v{T+1}, v20, v{T+1}",
                       f"v_cvt_pk_bf16_f32 v{W+2*t+h}, v{T}, v{T+1}"]
    for g in range(7, -1, -1):
        nxt = group_reads(g - 1) if g > 0 else []
        if g == 2: nxt = nxt + [("U", t) for t in range(4)]
        if g == 3: nxt = nxt + [("X", t) for t in range(4)]
        issued = 0; nm = 4 * (8 - g); m = 0
        for ii in range(4):
            i = 4 * g + ii
            extra = 4 if g in (1, 2) else 0
            A(f"s_waitcnt lgkmcnt({min(15, (3-ii)*3 + extra + issued)})")
            for t in range(7, g - 1, -1):
                k = 4 * (t - g) + 3 - ii
                c = v(ACC+4*t,4) if t in started else "0"
                started.add(t)
                A(f"v_mfma_f32_16x16x32_f16 {v(ACC+4*t,4)}, {v(AF+4*(i%8),4)}, {v(BF+4*k,4)}, {c}")
                m += 1
                want = min(len(nxt), (m * len(nxt) + nm - 1) // nm) if g < 7 else min(len(nxt), 3 * m)
                while issued < want:
                    do_read(nxt[issued]); issued += 1
                if g == 0 and filler:
                    A(filler.pop(0))
                    if m % 4 == 0 and filler: A(filler.pop(0))
    assert not filler
    stamp(A)
    A("s_cmp_eq_u32 s22, 1\ns_cbranch_scc1 K12_X1")
    R = 56; Q = 88; Q2 = 104
    for pi in range(2):
        if pi: A.label("K12_X1")
        for t in (3, 2, 1, 0): A(f"ds_write_b128 v16, {v(ACC+16*(1-pi)+4*t,4)} offset:{1024*t}")
        arrive(A, 18, 8)
        for p in range(8):
            A(f"v_lshlrev_b32 v{Q+2*p}, 16, v{W+p}\nv_and_b32 v{Q+2*p+1}, s36, v{W+p}")
            A(f"v_lshlrev_b32 v{Q2+2*p}, 16, v{X+p}\nv_and_b32 v{Q2+2*p+1}, s36, v{X+p}")
        await_(A, 18, 8, 2, T)
        for t in range(4): A(f"ds_read_b128 {v(R+4*t,4)}, v17 offset:{1024*t}")
        for t in range(4):
            A(f"s_waitcnt lgkmcnt({3-t})")
            for h in range(2): A(f"v_pk_add_f32 {v(R+4*t+2*h,2)}, {v(R+4*t+2*h,2)}, {v(ACC+16*pi+4*t+2*h,2)}")
        if not pi: A("s_branch K12_EPI")
    A.label("K12_EPI")
    stamp(A)
    P = 24
    for p in range(8): A(f"v_pk_mul_f32 {v(R+2*p,2)}, {v(R+2*p,2)}, v[22:23] op_sel_hi:[1,0]")
    for p in range(8): A(f"v_cvt_pk_bf16_f32 v{P+p}, v{R+2*p}, v{R+2*p+1}")
    for p in range(8): A(f"v_lshlrev_b32 v{R+2*p}, 16, v{P+p}\nv_and_b32 v{R+2*p+1}, s36, v{P+p}")
    for p in range(8): A(f"v_pk_add_f32 {v(R+2*p,2)}, {v(R+2*p,2)}, {v(Q+2*p,2)}")
    for p in range(8): A(f"v_cvt_pk_bf16_f32 v{P+p}, v{R+2*p}, v{R+2*p+1}")
    for p in range(8): A(f"v_lshlrev_b32 v{R+2*p}, 16, v{P+p}\nv_and_b32 v{R+2*p+1}, s36, v{P+p}")
    for p in range(8): A(f"v_pk_add_f32 {v(R+2*p,2)}, {v(R+2*p,2)}, {v(Q2+2*p,2)}")
    for t in range(4):
        for h in range(2): A(f"v_cvt_pk_bf16_f32 v{P+2*t+h}, v{R+4*t+2*h}, v{R+4*t+2*h+1}")
        A(f"global_store_dwordx2 v5, {v(P+2*t,2)}, s[40:41] offset:{512*t} {HT_ST}")
    stamp(A)
    if STAMP: A("s_waitcnt vmcnt(0)")
    stamp(A); stamp_rt(A); stamp_flush(A, 0, wsreg=WS)
    if DIAG2: A("s_waitcnt vmcnt(0)")
    if DIAG2: A("s_memrealtime s[90:91]\ns_waitcnt lgkmcnt(0)\ns_mov_b32 s77, s90")
    d2flush(A, [6, 7], DBG, 512)
    diag_end(A, 0, 0, 0)
    diag_end(A, 0, 255, 1)
    A("s_endpgm")

    A.label("K12_LN")
    stamp_reset(); stamp_rt(A); stamp(A)
    A(f"""
    s_setprio 1
    s_sub_u32 s58, s20, 4
    v_and_b32 v0, 255, v0
    v_add_u32 v6, {CNT}, v2
    s_mov_b64 exec, 15
    ds_write_b128 v6, v[8:11]
    s_mov_b64 exec, -1
    s_and_b32 s23, s2, 7
    s_lshl_b32 s21, s23, 5
    s_lshr_b32 s26, s2, 3
    s_or_b32 s21, s21, s26
    s_lshl_b32 s24, s21, 13
    s_lshl_b32 s25, s58, 11
    s_add_u32 s25, s25, s24
    v_add_u32 v4, s25, v2
    s_add_u32 s24, s24, 4096
    v_lshl_add_u32 v3, v0, 2, s24
    s_min_u32 s27, s26, 27
    s_cmp_ge_u32 s27, 14
    s_cselect_b32 s28, 14, 0
    s_sub_u32 s28, s27, s28
    s_lshl_b32 s28, s28, 8
    s_lshl_b32 s29, s23, 2
    s_add_u32 s29, s29, s58
    s_mul_i32 s29, s29, {16*3584}
    s_add_u32 s28, s28, s29
    v_lshrrev_b32 v7, 4, v1
    v_and_b32 v96, 15, v1
    v_mul_u32_u24 v7, 3584, v7
    v_lshl_add_u32 v7, v96, 4, v7
    v_add_u32 v7, s28, v7
    v_mov_b32 v128, 0
    s_add_u32 s30, s2, s58
    s_waitcnt lgkmcnt(0)
    s_cmp_lg_u32 s30, 0
    s_cbranch_scc1 K12_NN
    s_or_b32 s56, s56, 1
    v_mov_b32 v130, s56
    v_mov_b32 v131, s57
    s_mov_b64 exec, 1
    global_store_dwordx2 v128, v[130:131], s[{DBG}:{DBG+1}] sc1
    s_mov_b64 exec, -1
    """)
    A.label("K12_NN")
    A(f"""
    global_load_dwordx4 v[16:19], v4, s[4:5]
    global_load_dwordx4 v[20:23], v4, s[4:5] offset:1024
    """)
    XR = 136
    for r in range(8): A(f"global_load_dword v{XR+r}, v3, s[4:5] offset:{(r-4)*1024}")
    A(f"""
    s_barrier
    """)
    A("""
    s_cmp_ge_u32 s27, 14
    s_cselect_b32 s40, s46, s44
    s_cselect_b32 s41, s47, s45
    """)
    WL = 104
    for j in range(4):
        A(f"global_load_dwordx4 {v(WL+4*j,4)}, v7, s[40:41]")
        if j < 3: A(f"v_add_u32 v7, {4*3584}, v7")
    A(f"""
    s_lshl_b32 s30, s26, 2
    s_add_u32 s30, s30, s58
    s_cmp_ge_u32 s30, 64
    s_cselect_b32 s42, s46, s44
    s_cselect_b32 s43, s47, s45
    s_and_b32 s31, s30, 63
    s_mul_i32 s31, s31, {4*3584}
    s_and_b32 s32, s2, 1
    s_mul_i32 s33, s32, 1792
    s_add_u32 s31, s31, s33
    v_min_u32 v30, 55, v1
    v_mul_u32_u24 v31, 4682, v30
    v_lshrrev_b32 v31, 16, v31
    v_mul_u32_u24 v32, 14, v31
    v_sub_u32 v32, v30, v32
    v_mul_u32_u24 v31, 3584, v31
    v_lshl_add_u32 v31, v32, 7, v31
    v_add_u32 v152, s31, v31
    v_add_u32 v153, {256*3584}, v152
    s_mul_i32 s30, s30, {14*1024}
    s_lshl_b32 s32, s32, 9
    s_add_u32 s30, s30, s32
    v_lshrrev_b32 v30, 2, v1
    v_min_u32 v30, 13, v30
    v_and_b32 v31, 3, v1
    v_lshlrev_b32 v30, 10, v30
    v_lshl_add_u32 v30, v31, 7, v30
    v_add_u32 v154, s30, v30
    v_xor_b32 v155, 512, v154
    """)
    def clears():
        A(f"""
        s_lshl_b32 s30, s2, 2
        s_add_u32 s30, s30, s58
        s_mul_i32 s30, s30, 7168
        s_add_u32 s30, s30, {hx(ACT + 4096)}
        v_add_u32 v33, s30, v2
        v_mov_b32 v36, -1
        v_mov_b32 v37, -1
        v_mov_b32 v38, -1
        v_mov_b32 v39, -1
        """)
        for k in range(7): A(f"global_store_dwordx4 v33, v[36:39], s[{WS}:{WS+1}] offset:{1024*k - 4096} sc1")
    def touchW(): A("global_load_dword v156, v152, s[42:43]\nglobal_load_dword v157, v153, s[42:43]")
    def touchD():
        A("global_load_dword v156, v154, s[48:49]")
        if P2MAP == 0: A("global_load_dword v157, v155, s[48:49]")
    def touchV(): A("global_load_dword v156, v152, s[42:43]")
    jobs = {"c": clears, "w": touchW, "d": touchD, "v": touchV}
    NJ = {"c": 7, "w": 2, "d": 2 - P2MAP, "v": 1}
    n0 = 4
    for ch in SLOT0: jobs[ch](); n0 += NJ[ch]
    ct = 0
    A(f"""
    s_mov_b32 s38, 0x05040100
    s_mov_b32 s39, 0x07060302
    s_lshl_b32 s30, s58, 5
    s_add_u32 s30, s30, {LNB}
    v_mov_b32 v5, s30
    v_mov_b32 v6, {LNB}
    v_mov_b32 v12, {CNT}
    v_mov_b32 v13, 1
    s_lshl_b32 s30, s58, 12
    s_add_u32 s30, s30, {SHF}
    v_lshl_add_u32 v97, v1, 6, s30
    v_bfe_u32 v98, v1, 1, 2
    v_add_u32 v99, s30, v2
    """)
    for j in range(4):
        A(f"v_xor_b32 v{120+j}, {j}, v98\nv_lshl_add_u32 v{120+j}, v{120+j}, 4, v97")
    A(f"""
    v_lshrrev_b32 v3, 2, v1
    v_lshlrev_b32 v3, 14, v3
    v_and_b32 v97, 3, v1
    v_bfe_u32 v98, v1, 3, 2
    v_xor_b32 v97, v97, v98
    v_lshl_add_u32 v3, v97, 4, v3
    s_lshl_b32 s30, s58, 20
    s_lshl_b32 s31, s21, 6
    s_add_u32 s30, s30, s31
    """)
    addr64(A, 60, WS, "s30")
    A("v_add_u32 v124, 0x40000, v3\nv_add_u32 v125, 0x80000, v3\nv_add_u32 v126, 0xc0000, v3")
    stamp(A)
    if DIAG2: A("s_mov_b32 s70, s56")
    A(f"s_waitcnt vmcnt({8 + n0})")
    A(f"s_load_dwordx2 s[12:13], s[{DBG}:{DBG+1}], 0")
    if DIAG2: A("s_memrealtime s[90:91]\ns_waitcnt lgkmcnt(0)\ns_mov_b32 s71, s90")
    stamp(A)
    for row in range(2):
        for k in range(4):
            A(f"v_lshlrev_b32 v{24+8*row+2*k}, 16, v{16+4*row+k}")
            A(f"v_and_b32 v{24+8*row+2*k+1}, s36, v{16+4*row+k}")
    for row in range(2):
        b = 24 + 8 * row; t = 40 + 4 * row; q = 48 + 4 * row
        A(f"v_pk_add_f32 {v(t,2)}, {v(b,2)}, {v(b+2,2)}")
        A(f"v_pk_add_f32 {v(t+2,2)}, {v(b+4,2)}, {v(b+6,2)}")
        A(f"v_pk_mul_f32 {v(q,2)}, {v(b,2)}, {v(b,2)}")
        A(f"v_pk_mul_f32 {v(q+2,2)}, {v(b+2,2)}, {v(b+2,2)}")
    for row in range(2):
        b = 24 + 8 * row; t = 40 + 4 * row; q = 48 + 4 * row
        A(f"v_pk_add_f32 {v(t,2)}, {v(t,2)}, {v(t+2,2)}")
        A(f"v_pk_fma_f32 {v(q,2)}, {v(b+4,2)}, {v(b+4,2)}, {v(q,2)}")
        A(f"v_pk_fma_f32 {v(q+2,2)}, {v(b+6,2)}, {v(b+6,2)}, {v(q+2,2)}")
    for row in range(2):
        t = 40 + 4 * row; q = 48 + 4 * row
        A(f"v_add_f32 v{t}, v{t}, v{t+1}")
        A(f"v_pk_add_f32 {v(q,2)}, {v(q,2)}, {v(q+2,2)}")
    for row in range(2):
        q = 48 + 4 * row
        A(f"v_add_f32 v{q}, v{q}, v{q+1}")
    dpp_reduce(A, "v_add_f32", [40, 44, 48, 52])
    def both(f):
        for row in range(2): A(f(40 + 4 * row, 48 + 4 * row))
    both(lambda m, t: f"v_mul_f32 v{m}, {hx(f2u(1/512))}, v{m}\nv_mul_f32 v{t}, {hx(f2u(1/512))}, v{t}")
    both(lambda m, t: f"v_fma_f32 v{t}, -v{m}, v{m}, v{t}")
    both(lambda m, t: f"v_max_f32 v{t}, 0, v{t}")
    both(lambda m, t: f"v_cvt_pk_bf16_f32 v{t}, v{m}, v{t}")
    both(lambda m, t: f"v_lshlrev_b32 v{m}, 16, v{t}\nv_and_b32 v{t}, s36, v{t}")
    both(lambda m, t: f"v_add_f32 v{t}, {hx(f2u(1e-5))}, v{t}")
    both(lambda m, t: f"v_cvt_pk_bf16_f32 v{t}, v{t}, v{t}")
    both(lambda m, t: f"v_lshlrev_b32 v{t}, 16, v{t}")
    both(lambda m, t: f"v_sqrt_f32 v{t}, v{t}")
    both(lambda m, t: f"v_cvt_pk_bf16_f32 v{t}, v{t}, v{t}")
    both(lambda m, t: f"v_lshlrev_b32 v{m+1}, 16, v{t}")
    both(lambda m, t: f"v_rcp_f32 v{m+2}, v{m+1}")
    A("""
    s_mov_b32 exec_lo, 0
    s_mov_b32 exec_hi, 0x80000000
    ds_write_b128 v5, v[40:43]
    ds_write_b128 v5, v[44:47] offset:16
    ds_add_u32 v12, v13 offset:32
    s_mov_b64 exec, -1
    """)
    stamp(A)
    A(f"s_waitcnt vmcnt({n0})")
    for k in range(4):
        A(f"v_perm_b32 v{56+k}, v{XR+1+2*k}, v{XR+2*k}, s38")
        A(f"v_perm_b32 v{60+k}, v{XR+1+2*k}, v{XR+2*k}, s39")
    A("ds_write_b128 v122, v[56:59]\nds_write_b128 v123, v[60:63]")
    U = 24
    for r in range(8):
        A(f"v_lshlrev_b32 v{U+2*r}, 16, v{XR+r}")
        A(f"v_and_b32 v{U+2*r+1}, s36, v{XR+r}")
    await_(A, 12, 32, 4, 14)
    stamp(A)
    ST = 64
    for r in range(8): A(f"ds_read_b128 {v(ST+4*r,4)}, v6 offset:{16*r}")
    for r in range(8):
        A(f"s_waitcnt lgkmcnt({7-r})")
        A(f"v_pk_add_f32 {v(U+2*r,2)}, {v(U+2*r,2)}, {v(ST+4*r,2)} op_sel_hi:[1,0] neg_lo:[0,1] neg_hi:[0,1]")
    for r in range(8): A(f"v_cvt_pk_bf16_f32 v{XR+r}, v{U+2*r}, v{U+2*r+1}")
    for r in range(8):
        A(f"v_lshlrev_b32 v{U+2*r}, 16, v{XR+r}")
        A(f"v_and_b32 v{U+2*r+1}, s36, v{XR+r}")
    TG = 4
    A.label("K12_NW")
    A(f"""
    s_cmp_lg_u32 s12, 0
    s_cbranch_scc1 K12_NOK
    global_load_dwordx2 v[130:131], v128, s[{DBG}:{DBG+1}] sc1
    s_waitcnt vmcnt(0)
    v_readfirstlane_b32 s12, v130
    v_readfirstlane_b32 s13, v131
    s_branch K12_NW
    """)
    A.label("K12_NOK")
    A("""
    s_lshr_b64 s[14:15], s[12:13], 24
    s_mul_i32 s15, s12, 0x9e3779b1
    s_xor_b32 s13, s14, s15
    v_mov_b32 v132, 0x70007
    """)
    for h in range(2):
        for k in range(4):
            A(f"""
            s_bfe_u32 s14, s{12+h}, {hx((3 << 16) | (6*k))}
            s_bfe_u32 s15, s{12+h}, {hx((3 << 16) | (6*k+3))}
            s_lshl_b32 s15, s15, 16
            s_or_b32 s{TG+4*h+k}, s14, s15
            """)
    for k in range(8): A(f"v_xor_b32 v{56+k}, s{TG+k}, v{56+k}")
    Q = 40
    for r in range(8): A(f"v_pk_mul_f32 {v(Q+2*r,2)}, {v(U+2*r,2)}, {v(ST+4*r+2,2)} op_sel_hi:[1,0]")
    for r in range(8): A(f"v_pk_fma_f32 {v(U+2*r,2)}, {v(Q+2*r,2)}, {v(ST+4*r,2)}, {v(U+2*r,2)} op_sel:[0,1,0] op_sel_hi:[1,1,1] neg_lo:[1,0,0] neg_hi:[1,0,0]")
    for r in range(8): A(f"v_pk_fma_f32 {v(Q+2*r,2)}, {v(U+2*r,2)}, {v(ST+4*r+2,2)}, {v(Q+2*r,2)} op_sel_hi:[1,0,1]")
    for r in range(8): A(f"v_cvt_pk_bf16_f32 v{XR+r}, v{Q+2*r}, v{Q+2*r+1}")
    for r in range(8):
        A(f"v_lshlrev_b32 v{U+2*r}, 16, v{XR+r}")
        A(f"v_and_b32 v{U+2*r+1}, s36, v{XR+r}")
    for k in range(4): A(f"v_cvt_pk_f16_f32 v{16+k}, v{U+4*k}, v{U+4*k+2}")
    for k in range(4): A(f"v_cvt_pk_f16_f32 v{20+k}, v{U+4*k+1}, v{U+4*k+3}")
    for k in range(8): A(f"v_bfi_b32 v{16+k}, v132, v{56+k}, v{16+k}")
    A("ds_write_b128 v120, v[16:19]\nds_write_b128 v121, v[20:23]")
    for k in range(4): A(f"ds_read_b128 {v(40+4*k,4)}, v99 offset:{1024*k}")
    for k in range(4):
        A(f"s_waitcnt lgkmcnt({3-k})")
        A(f"global_store_dwordx4 v{[3,124,125,126][k]}, {v(40+4*k,4)}, s[60:61] sc1")
    stamp(A)
    A("s_setprio 0")
    n1 = 0
    for ch in SLOT1: jobs[ch](); n1 += NJ[ch]
    A(f"s_waitcnt vmcnt({4 + n1})")
    for j in range(4):
        for k in range(4):
            d = 64 + 8 * j + 2 * k
            A(f"v_lshlrev_b32 v{d}, 16, v{WL+4*j+k}\nv_and_b32 v{d+1}, s36, v{WL+4*j+k}")
    for st in (16, 8):
        for i in range(0, st, 2): A(f"v_pk_add_f32 {v(64+i,2)}, {v(64+i,2)}, {v(64+st+i,2)}")
    A(f"""
    v_lshlrev_b32 v7, 5, v0
    v_add_u32 v7, {CSP}, v7
    ds_write_b128 v7, v[64:67]
    ds_write_b128 v7, v[68:71] offset:16
    s_mov_b64 exec, 1
    ds_add_rtn_u32 v14, v12, v13 offset:36
    s_mov_b64 exec, -1
    s_waitcnt lgkmcnt(0)
    v_readfirstlane_b32 s30, v14
    """)
    if DIAG2: A("s_memrealtime s[90:91]\ns_waitcnt lgkmcnt(0)\ns_mov_b32 s72, s90")
    stamp(A)
    A(f"""
    s_cmp_lg_u32 s30, 3
    s_cbranch_scc1 K12_NCS
    v_lshlrev_b32 v7, 3, v1
    v_add_u32 v15, {CSP}, v7
    s_mul_i32 s30, s23, {3584*4}
    s_lshl_b32 s31, s27, 9
    s_add_u32 s30, s30, s31
    s_add_u32 s30, s30, {hx(CSUM)}
    v_add_u32 v7, s30, v7
    """)
    for p_ in range(16): A(f"ds_read_b64 {v(64+2*p_,2)}, v15 offset:{512*p_}")
    A("s_waitcnt lgkmcnt(0)")
    for st in (16, 8, 4, 2):
        for i in range(0, st, 2): A(f"v_pk_add_f32 {v(64+i,2)}, {v(64+i,2)}, {v(64+st+i,2)}")
    A(f"global_store_dwordx2 v7, v[64:65], s[{WS}:{WS+1}]")
    A.label("K12_NCS")
    A(f"""
    s_lshl_b32 s30, s2, 14
    s_lshl_b32 s31, s58, 12
    s_add_u32 s30, s30, s31
    v_add_u32 v17, s30, v2
    v_and_b32 v18, 1, v1
    v_cmp_eq_u32 vcc, 1, v18
    v_mul_u32_u24 v18, {CH2}, v18
    v_bfe_u32 v19, v1, 1, 1
    v_mul_u32_u24 v19, {XOFF - UOFF - 512}, v19
    v_lshrrev_b32 v20, 2, v1
    v_lshlrev_b32 v20, 4, v20
    s_lshl_b32 s30, s58, 10
    s_add_u32 s30, s30, {CVB + UOFF + 512}
    v_add3_u32 v18, v18, v19, v20
    v_add_u32 v18, s30, v18
    v_mov_b32 v56, s4
    v_mov_b32 v57, s5
    v_mov_b32 v58, s6
    v_mov_b32 v59, s7
    v_mov_b32 v60, s8
    v_mov_b32 v61, s9
    v_mov_b32 v62, s10
    v_mov_b32 v63, s11
    v_cndmask_b32 v56, v56, v60, vcc
    v_cndmask_b32 v57, v57, v61, vcc
    v_cndmask_b32 v58, v58, v62, vcc
    v_cndmask_b32 v59, v59, v63, vcc
    v_cmp_eq_u32 vcc, 0, v19
    v_cndmask_b32 v60, 0, v132, vcc
    v_not_b32 v61, v60
    """)
    if POLLW:
        await_(A, 12, 4, 2, 14) if POLLW == 2 else await_(A, 12, 0, 2, 14)
    stamp(A)
    if DIAG2: A("s_memrealtime s[90:91]\ns_waitcnt lgkmcnt(0)\ns_mov_b32 s73, s90")
    A.label("K12_PL")
    for k in range(4): A(f"global_load_dwordx4 {v(64+4*k,4)}, v17, s[{WS}:{WS+1}] offset:{1024*k} sc1")
    for k in range(4):
        A(f"s_waitcnt vmcnt({3-k})")
        for i in range(4): A(f"v_xor_b32_dpp v{80+i}, v{64+4*k+i}, v{64+4*k+i} quad_perm:[2,3,2,3] row_mask:0xf bank_mask:0xf")
        for i in range(4): A(f"v_and_b32 v{64+4*k+i}, v61, v{64+4*k+i}")
        A(f"ds_write_b128 v18, {v(64+4*k,4)} offset:{256*k}")
        for i in range(4): A(f"v_xor_b32 v{80+i}, v{80+i}, v{56+i}")
        A(f"v_or3_b32 v48, v80, v81, {'0' if k == 0 else 'v48'}")
        A("v_or3_b32 v48, v82, v83, v48")
    A(f"""
    v_and_b32 v48, v48, v60
    v_cmp_ne_u32 vcc, 0, v48
    s_cbranch_vccz K12_GO
    s_sleep 2
    s_branch K12_PL
    """)
    A.label("K12_GO")
    stamp(A)
    A("s_waitcnt lgkmcnt(0)")
    stamp(A)
    A("s_barrier")
    for ch in SLOT2: jobs[ch]()
    A(f"""
    s_cmp_lg_u32 s58, 0
    s_cbranch_scc1 K12_LE
    s_cmp_ge_u32 s2, 64
    s_cbranch_scc1 K12_LE
    s_lshl_b32 s30, s2, 7
    s_add_u32 s30, s30, {hx(FLG)}
    v_mov_b32 v30, s30
    s_mov_b64 exec, 1
    global_store_dwordx2 v30, v[8:9], s[{WS}:{WS+1}] sc1
    s_mov_b64 exec, -1
    """)
    A.label("K12_LE")
    if DIAG2: A("s_mov_b32 s85, s12")
    d2flush(A, [0, 1, 2, 3, 4, 5, 15], DBG, 512)
    if STAMP: A("s_waitcnt vmcnt(0)")
    stamp(A); stamp_rt(A); stamp_flush(A, 0, wsreg=WS)
    A.label("K12_END")
    A("s_endpgm")

HT_ST = os.environ.get('HT_ST', '')
POLLW = int(os.environ.get('POLLW', '1'))
TLBT = int(os.environ.get('TLBT', '0'))
CODET = int(os.environ.get('CODET', '1'))
SLOT0 = os.environ.get('SLOT0', '')
SLOT1 = os.environ.get('SLOT1', '')
SLOT2 = os.environ.get('SLOT2', 'cv')
```

```python
from common import *

NS = 6
RING = NS * 8192
HR, GR, UR = 0, RING, 2 * RING
PAR = 3 * RING
CSL = PAR + 2048
HTL = CSL + 1024
K3_LDS = HTL + 8192
PSLEEP = int(os.environ.get('PSLEEP', '4'))
FLAGA = int(os.environ.get('FLAGA', '6'))
K3T = int(os.environ.get('K3T', '1'))
B16E = int(os.environ.get('B16E', '1'))
WAKEN = int(os.environ.get('WAKEN', '2'))
AB = 1
LA = int(os.environ.get('LA', '6'))
SLOT = {}
for i in range(6):
    for l in range(3): SLOT[3*i+l] = 6*l + (10+i) % 6
for c in range(18, 28): SLOT[c] = SLOT[c-18]
def kstep(m, half): return 4 * m + 2 * half if m < 14 else 4 * (m - 14) + 1 + 2 * half

ACT_ST = "sc1"
def look(c): return 2 if c < 3 else (3 if c < 8 else 4)

def wd_setup(A):
    A(f"""
    v_lshrrev_b32 v29, 3, v1
    v_and_b32 v30, 7, v1
    v_and_b32 v31, 6, v29
    v_xor_b32 v30, v30, v31
    v_lshlrev_b32 v31, 10, v29
    v_lshl_add_u32 v24, v30, 4, v31
    v_add_u32 v25, 7168, v24
    v_add_u32 v26, {2*7168}, v24
    v_add_u32 v27, {3*7168}, v24
    s_lshl_b32 s35, s61, 7
    s_add_u32 s44, s16, s35
    s_addc_u32 s45, s17, 0
    s_sub_u32 s46, {1792*1024}, s35
    s_mov_b32 s47, 0x20000
    s_lshl_b32 s35, s26, 17
    s_cmp_eq_u32 s26, 2
    s_cselect_b32 s38, {55*32768}, 0
    s_sub_u32 s38, s35, s38
    v_lshl_add_u32 v28, v1, 4, s29
    """)

def k3(A):
    P2M = ["""s_lshl_b32 s60, s21, 2
    s_and_b32 s61, s22, 3
    s_or_b32 s60, s60, s61
    s_lshr_b32 s61, s22, 2""", """s_lshr_b32 s60, s21, 1
    s_lshl_b32 s60, s60, 3
    s_and_b32 s61, s22, 7
    s_or_b32 s60, s60, s61
    s_and_b32 s61, s21, 1
    s_lshl_b32 s61, s61, 2
    s_lshr_b32 s62, s22, 3
    s_or_b32 s61, s61, s62"""][P2MAP]
    kernel_head(A, "k3_kernel")
    diag_start(A)
    A(f"""
    s_load_dwordx4 s[8:11], s[0:1], 64
    s_load_dwordx4 s[12:15], s[0:1], 96
    s_load_dwordx4 s[16:19], s[0:1], 80
    v_lshrrev_b32 v1, 6, v0
    v_readfirstlane_b32 s20, v1
    v_and_b32 v1, 63, v0
    s_cmp_ge_u32 s2, 256
    s_cbranch_scc1 K3_END
    s_and_b32 s21, s2, 7
    s_lshr_b32 s22, s2, 3
    s_mov_b32 s37, 0xffff0000
    {P2M}
    s_cmp_lt_u32 s22, 4
    s_cbranch_scc1 K3_SPARE
    s_sub_u32 s22, s22, 4
    s_lshr_b32 s23, s21, 1
    s_lshl_b32 s23, s23, 2
    s_and_b32 s24, s22, 3
    s_or_b32 s23, s23, s24
    s_and_b32 s24, s21, 1
    s_mul_i32 s24, s24, 7
    s_lshr_b32 s25, s22, 2
    s_add_u32 s24, s24, s25
    s_cmp_lt_u32 s20, 4
    s_cbranch_scc1 K3_COMP
    s_cmp_eq_u32 s20, 7
    s_cbranch_scc1 K3_HELP
    """)
    A(f"""
    s_sub_u32 s26, s20, 4
    v_lshrrev_b32 v4, 4, v1
    v_and_b32 v5, 15, v1
    v_lshlrev_b32 v6, 1, v4
    v_xor_b32 v6, v6, v5
    v_xor_b32 v7, 8, v6
    s_cmp_eq_u32 s26, 0
    s_movk_i32 s27, 3584
    s_cselect_b32 s27, 4096, s27
    v_mul_u32_u24 v9, s27, v4
    v_lshl_add_u32 v6, v6, 4, v9
    v_lshl_add_u32 v7, v7, 4, v9
    s_lshl_b32 s28, s27, 2
    s_lshl_b32 s34, s27, 5
    """)
    for j in range(8):
        A(f"s_mul_i32 s29, s28, {j}\ns_sub_u32 s29, s29, {(j & 3) * 1024}")
        A(f"v_add_u32 v{16+j}, s29, v{6 + (j & 1)}")
    A(f"""
    s_mul_i32 s29, s26, {RING}
    s_lshl_b32 s28, s23, 8
    s_add_u32 s30, s28, {hx(HT)}
    s_sub_u32 s28, 0x200000, s28
    s_lshl_b32 s31, s24, 8
    s_sub_u32 s32, {512*3584}, s31
    s_waitcnt lgkmcnt(0)
    s_cmp_eq_u32 s26, 1
    s_cselect_b32 s40, s8, s10
    s_cselect_b32 s41, s9, s11
    s_cmp_eq_u32 s26, 0
    s_cselect_b32 s40, s14, s40
    s_cselect_b32 s41, s15, s41
    s_cselect_b32 s30, s30, s31
    s_cselect_b32 s42, s28, s32
    s_add_u32 s40, s40, s30
    s_addc_u32 s41, s41, 0
    s_mov_b32 s43, 0x20000
    s_mov_b32 s33, 0
    """)
    def issue(c):
        sl = (c % NS) * 8192
        for j in range(8):
            if j % 4 == 0: A(f"s_add_u32 m0, s29, {sl + 1024 * j}")
            A(f"buffer_load_dwordx4 v{16+j}, s[40:43], s33 offen offset:{1024*(j&3)} lds")
        A("s_add_u32 s33, s33, s34")
    issue(0); issue(1); last = 1
    wd_setup(A)
    order = [0] * 8 + [1] * 8
    HR_ = 32
    def src(m0, half):
        if m0 + 2 < 14 or m0 >= 14: A(f"s_add_u32 s36, s35, {kstep(m0, half) * 32768}")
        else: A(f"s_add_u32 s36, s38, {kstep(m0, half) * 32768}")
    def held(k):
        i, j = divmod(k, 8)
        if j % 4 == 0: src(18 + 3 * i, j >> 2)
        A(f"buffer_load_dwordx4 {v(HR_+4*k,4)}, v{24+(j&3)}, s[44:47], s36 offen offset:{1024*(j&3)}")
    def waitc(c):
        idx = max(k for k, x in enumerate(order) if x == c)
        A(f"s_waitcnt vmcnt({len(order) - 1 - idx})")
    for c in range(12):
        waitc(c)
        A("s_barrier")
        while last < min(15, c + look(c)):
            assert last + 1 - NS <= c - 1
            last += 1; issue(last); order += [last] * 8
    assert last == 15
    A.label("K3_LT")
    def wd_dma(i):
        for j in range(8):
            if j % 4 == 0:
                A(f"s_add_u32 m0, s29, {((10 + i) % 6) * 8192 + 1024 * j}")
                src(3 * i, j >> 2)
            A(f"buffer_load_dwordx4 v{24+(j&3)}, s[44:47], s36 offen offset:{1024*(j&3)} lds")
    waitc(12)
    A("s_barrier")
    wd_dma(0); order += ["w"] * 8
    waitc(15)
    A("s_barrier")
    wd_dma(1); wd_dma(2)
    for k in range(24): held(k)
    A("s_waitcnt vmcnt(24)")
    A("s_barrier")
    wd_dma(3); wd_dma(4); wd_dma(5)
    A("s_waitcnt vmcnt(0)")
    if not AB: A("s_barrier")
    A("s_barrier")
    for i in range(2):
        for j in range(8): A(f"ds_write_b128 v28, {v(HR_+32*i+4*j,4)} offset:{((10+i)%6)*8192 + 1024*j}")
    A("s_barrier")
    for j in range(8): A(f"ds_write_b128 v28, {v(HR_+64+4*j,4)} offset:{((10+2)%6)*8192 + 1024*j}")
    A("s_waitcnt lgkmcnt(0)")
    A("s_barrier")
    A("s_endpgm")

    A.label("K3_HELP")
    A(f"""
    s_lshl_b32 s26, s23, 8
    s_add_u32 s26, s26, {hx(FLG)}
    v_and_b32 v2, 1, v1
    v_lshl_add_u32 v2, v2, 7, s26
    s_lshl_b32 s27, s23, 11
    s_add_u32 s27, s27, {hx(PARG)}
    v_lshlrev_b32 v3, 4, v1
    v_add_u32 v4, {PAR}, v3
    v_lshrrev_b32 v6, 5, v1
    v_mul_u32_u24 v6, {1792*4 - 512}, v6
    s_lshl_b32 s28, s24, 9
    s_add_u32 s28, s28, {hx(CSUM)}
    v_add3_u32 v6, v6, v3, s28
    s_waitcnt lgkmcnt(0)
    s_add_u32 s40, s14, s27
    s_addc_u32 s41, s15, 0
    """)
    for c in range(9):
        A("s_barrier")
        if 1 <= c <= 4:
            for k in range(2):
                A(f"global_load_dwordx4 {v(16+4*(2*(c-1)+k),4)}, v6, s[14:15]")
                A(f"v_add_u32 v6, {3584*4}, v6")
        if c == 5 and K3T:
            A(f"""
            v_and_b32 v48, 7, v1
            s_lshl_b32 s30, s23, 3
            v_add_u32 v48, s30, v48
            v_mul_u32_u24 v48, {56*1024}, v48
            s_lshl_b32 s30, s24, 12
            s_add_u32 s30, s30, {hx(ACT)}
            v_add_u32 v48, s30, v48
            s_mov_b32 s30, {hx(FLG + 8192 - 64)}
            v_writelane_b32 v48, s30, 8
            s_lshl_b32 s30, s60, 16
            v_mov_b32 v49, s30
            s_mov_b64 exec, 0x1ff
            global_load_dword v50, v48, s[14:15]
            s_mov_b64 exec, 1
            global_load_dword v50, v49, s[18:19]
            s_mov_b64 exec, -1
            """)
        if c == 6:
            A(f"s_waitcnt vmcnt({2 if K3T else 0})")
            for i in range(16): A(f"v_add_f32 v{16+i}, v{16+i}, v{32+i}")
        if c == 7:
            for st in (8, 4):
                for i in range(st): A(f"v_add_f32 v{16+i}, v{16+i}, v{16+st+i}")
            A("ds_write_b128 v4, v[16:19] offset:2048")
    A("global_load_dword v5, v2, s[14:15] sc1")
    A("s_barrier\ns_barrier")
    A.label("K3_POLL")
    A("""
    s_waitcnt vmcnt(0)
    v_cmp_eq_u32 vcc, 0, v5
    s_cbranch_vccz K3_GOT
    s_sleep 4
    global_load_dword v5, v2, s[14:15] sc1
    s_branch K3_POLL
    """)
    A.label("K3_GOT")
    A("""
    global_load_dwordx4 v[8:11], v3, s[40:41] sc1
    global_load_dwordx4 v[12:15], v3, s[40:41] offset:1024 sc1
    s_barrier
    s_barrier
    s_waitcnt vmcnt(0)
    ds_write_b128 v4, v[8:11]
    ds_write_b128 v4, v[12:15] offset:1024
    s_waitcnt lgkmcnt(0)
    """)
    A.label("K3_HT")
    A("s_mov_b32 s26, 0\ns_mov_b32 s29, 0")
    wd_setup(A)
    A(f"""
    v_lshlrev_b32 v31, 12, v29
    v_lshl_add_u32 v20, v30, 4, v31
    v_add_u32 v21, {8*4096 - 1024}, v20
    v_add_u32 v22, {2*(8*4096 - 1024)}, v20
    v_add_u32 v23, {3*(8*4096 - 1024)}, v20
    s_lshl_b32 s30, s61, 18
    s_lshl_b32 s31, s60, 7
    s_add_u32 s30, s30, s31
    s_add_u32 s31, s30, {hx(HT)}
    s_add_u32 s48, s14, s31
    s_addc_u32 s49, s15, 0
    s_sub_u32 s50, 0x200000, s30
    s_mov_b32 s51, 0x20000
    """)
    A("s_barrier")
    for j in range(8):
        if j % 4 == 0: A(f"s_mov_b32 m0, {HTL + 1024*j}\ns_mov_b32 s36, {(j >> 2) * 32 * 4096}")
        A(f"buffer_load_dwordx4 v{20+(j&3)}, s[48:51], s36 offen offset:{1024*(j&3)} lds")
    for j in range(8):
        if j % 4 == 0: A(f"s_mov_b32 s36, {kstep(27, j >> 2) * 32768}")
        A(f"buffer_load_dwordx4 {v(32+4*j,4)}, v{24+(j&3)}, s[44:47], s36 offen offset:{1024*(j&3)}")
    A("""
    s_waitcnt vmcnt(8)
    s_barrier
    s_barrier
    s_barrier
    s_waitcnt vmcnt(0)
    """)
    if not AB: A("s_barrier")
    for j in range(8): A(f"ds_write_b128 v28, {v(32+4*j,4)} offset:{SLOT[27]*8192 + 1024*j}")
    A("""
    s_waitcnt lgkmcnt(0)
    s_barrier
    s_endpgm
    """)

    A.label("K3_SPARE")
    A(f"""
    s_lshl_b32 s23, s21, 2
    s_add_u32 s23, s23, s22
    v_lshrrev_b32 v2, 3, v1
    v_and_b32 v3, 7, v1
    v_lshlrev_b32 v4, 12, v2
    v_lshl_add_u32 v4, v3, 4, v4
    s_lshl_b32 s24, s20, 18
    s_lshl_b32 s25, s23, 7
    s_add_u32 s24, s24, s25
    s_add_u32 s24, s24, {hx(HT)}
    s_waitcnt lgkmcnt(0)
    s_add_u32 s40, s14, s24
    s_addc_u32 s41, s15, 0
    """)
    for j in range(8):
        A(f"global_load_dwordx4 {v(16+4*j,4)}, v4, s[40:41]")
        if j < 7: A("v_add_u32 v4, 0x8000, v4")
    for k in range(16): A(f"v_mov_b32 v{48+k}, 0")
    for j in range(8):
        A(f"s_waitcnt vmcnt({7-j})")
        for k in range(4):
            A(f"v_lshlrev_b32 v{64+2*k}, 16, v{16+4*j+k}\nv_and_b32 v{65+2*k}, s37, v{16+4*j+k}")
        for k in range(4):
            A(f"v_pk_add_f32 {v(48+2*k,2)}, {v(48+2*k,2)}, {v(64+2*k,2)}")
            A(f"v_pk_fma_f32 {v(56+2*k,2)}, {v(64+2*k,2)}, {v(64+2*k,2)}, {v(56+2*k,2)}")
    A(f"""
    v_lshrrev_b32 v6, 3, v0
    v_lshlrev_b32 v6, 9, v6
    v_lshl_add_u32 v6, v3, 5, v6
    ds_write_b128 v6, v[48:51]
    ds_write_b128 v6, v[52:55] offset:16
    ds_write_b128 v6, v[56:59] offset:256
    ds_write_b128 v6, v[60:63] offset:272
    s_lshl_b32 s24, s20, 12
    v_lshl_add_u32 v7, v1, 2, s24
    s_lshl_b32 s24, s20, 9
    s_add_u32 s24, s24, 32768
    v_lshl_add_u32 v12, v1, 3, s24
    v_lshlrev_b32 v13, 3, v1
    s_waitcnt lgkmcnt(0)
    s_barrier
    """)
    for p in range(8): A(f"ds_read2st64_b32 {v(16+2*p,2)}, v7 offset0:{2*p} offset1:{2*p+1}")
    A("s_waitcnt lgkmcnt(0)")
    for st in (8, 4, 2):
        for i in range(0, st, 2): A(f"v_pk_add_f32 {v(16+i,2)}, {v(16+i,2)}, {v(16+st+i,2)}")
    A("""
    ds_write_b64 v12, v[16:17]
    s_waitcnt lgkmcnt(0)
    s_barrier
    s_cmp_lg_u32 s20, 0
    s_cbranch_scc1 K3_SP2
    """)
    for p in range(8): A(f"ds_read_b64 {v(32+2*p,2)}, v13 offset:{32768 + 512*p}")
    A(f"""
    s_lshl_b32 s24, s23, 10
    s_add_u32 s24, s24, {hx(PARG)}
    s_add_u32 s40, s14, s24
    s_addc_u32 s41, s15, 0
    v_lshlrev_b32 v14, 4, v1
    s_lshl_b32 s24, s23, 7
    s_add_u32 s24, s24, {hx(FLG)}
    v_mov_b32 v15, s24
    s_waitcnt lgkmcnt(0)
    """)
    for st in (8, 4, 2):
        for i in range(0, st, 2): A(f"v_pk_add_f32 {v(32+i,2)}, {v(32+i,2)}, {v(32+st+i,2)}")
    A(f"""
    v_mul_f32 v32, {hx(f2u(1/512))}, v32
    v_mul_f32 v33, {hx(f2u(1/512))}, v33
    v_fma_f32 v33, -v32, v32, v33
    v_max_f32 v33, 0, v33
    v_cvt_pk_bf16_f32 v34, -v32, v33
    v_lshlrev_b32 v36, 16, v34
    v_and_b32 v34, s37, v34
    v_add_f32 v34, {hx(f2u(1e-5))}, v34
    v_cvt_pk_bf16_f32 v34, v34, v34
    v_lshlrev_b32 v34, 16, v34
    v_sqrt_f32 v34, v34
    v_cvt_pk_bf16_f32 v34, v34, v34
    v_lshlrev_b32 v34, 16, v34
    v_rcp_f32 v38, v34
    v_mul_f32 v39, v34, v34
    v_mov_b32 v37, 1
    v_mul_f32 v38, {hx(f2u(-L2E))}, v38
    global_store_dwordx4 v14, v[36:39], s[40:41] sc1
    s_waitcnt vmcnt(0)
    s_mov_b64 exec, 1
    global_store_dword v15, v37, s[14:15] sc1
    s_mov_b64 exec, -1
    """)
    A.label("K3_SP2")
    if PREF & 4:
        A(f"""
        v_lshrrev_b32 v5, 2, v1
        v_and_b32 v6, 3, v1
        v_lshlrev_b32 v5, 10, v5
        v_lshl_add_u32 v5, v6, 7, v5
        s_mul_i32 s24, s22, {448*1024}
        s_mul_i32 s25, s20, {56*1024}
        s_add_u32 s24, s24, s25
        s_and_b32 s25, s21, 1
        s_lshl_b32 s25, s25, 9
        s_add_u32 s24, s24, s25
        s_add_u32 s52, s16, s24
        s_addc_u32 s53, s17, 0
        s_sub_u32 s54, {1792*1024}, s24
        s_min_u32 s54, s54, {56*1024}
        s_mov_b32 s55, 0x20000
        s_barrier
        """)
        for j in range(4):
            A(f"s_mov_b32 s26, {16*1024*j}")
            A(f"buffer_load_dword v{8+j}, v5, s[52:55], s26 offen")
        A("s_waitcnt vmcnt(0)")
    A(f"""
    s_cmp_lt_u32 s20, 4
    s_cbranch_scc1 K3_SP3
    s_cmp_eq_u32 s20, 7
    s_cbranch_scc1 K3_SP4
    s_sub_u32 s26, s20, 4
    s_mul_i32 s29, s26, {RING}
    """)
    wd_setup(A)
    A("s_branch K3_LT")
    A.label("K3_SP4")
    A("s_barrier\ns_branch K3_HT")
    A.label("K3_SP3")
    if DIAG2: A("s_mov_b32 s78, 0\ns_mov_b32 s79, 0\ns_mov_b32 s80, 0\ns_mov_b32 s81, 0")
    for c in range(3 if B16E else 2): A("s_barrier")
    stamp_reset(); stamp_rt(A); stamp(A)
    for c in range(18): stamp(A)
    A("s_branch K3_P2")

    A.label("K3_COMP")
    if DIAG2: A("s_memrealtime s[90:91]\ns_waitcnt lgkmcnt(0)\ns_mov_b32 s78, s90")
    stamp_reset(); stamp_rt(A); stamp(A)
    ACC = 32; F = [160, 208]
    TA, GA, UA = 2, 6, 10
    A(f"""
    s_and_b32 s26, s20, 1
    s_lshr_b32 s27, s20, 1
    v_lshrrev_b32 v17, 2, v1
    v_and_b32 v18, 3, v1
    v_and_b32 v19, 7, v17
    v_lshlrev_b32 v20, 8, v17
    v_lshl_add_u32 v20, v18, 3, v20
    s_lshl_b32 s28, s26, 2
    s_lshl_b32 s30, s27, 2
    """)
    for i in range(4):
        A(f"""
        s_add_u32 s29, s28, {i}
        v_xor_b32 v21, s29, v19
        v_lshl_add_u32 v{TA+i}, v21, 5, v20
        s_add_u32 s29, s30, {i}
        v_xor_b32 v21, s29, v19
        v_lshl_add_u32 v21, v21, 5, v20
        v_add_u32 v{GA+i}, {GR}, v21
        v_add_u32 v{UA+i}, {UR}, v21
        """)
    A(f"""
    v_lshrrev_b32 v17, 4, v1
    v_and_b32 v18, 15, v1
    s_lshl_b32 s28, s27, 8
    s_add_u32 s28, s28, {CSL}
    v_lshl_add_u32 v14, v17, 4, s28
    s_lshl_b32 s29, s26, 10
    s_add_u32 s29, s29, {PAR}
    v_lshl_add_u32 v15, v18, 4, s29
    v_lshlrev_b32 v16, 4, v1
    s_lshl_b32 s29, s23, 3
    s_lshl_b32 s30, s26, 2
    s_add_u32 s29, s29, s30
    s_mul_i32 s29, s29, {56*1024}
    s_lshl_b32 s30, s24, 12
    s_add_u32 s29, s29, s30
    s_lshl_b32 s30, s27, 11
    s_add_u32 s29, s29, s30
    s_add_u32 s29, s29, {hx(ACT)}
    s_waitcnt lgkmcnt(0)
    """)
    addr64(A, 42, 14, "s29")
    for i in range(1, 4): addr64(A, 42 + 2 * i, 40 + 2 * i, 56 * 1024)
    def reads(c):
        o = (c % NS) * 8192; f = F[c & 1]
        order = [("T", 0), ("G", 0), ("T", 1), ("T", 2), ("T", 3), ("U", 0)] + [(k, a) for a in range(1, 4) for k in "GU"]
        L = []
        for kind, x in order:
            for kk in range(2):
                base = {"T": TA, "G": GA, "U": UA}[kind]; ro = {"T": 0, "G": 16, "U": 32}[kind]
                L.append(f"ds_read_b64_tr_b16 {v(f+ro+4*x+2*kk,2)}, v{base+x} offset:{o + 4096*kk}")
        return L
    A("s_barrier")
    if DIAG2: A("s_memrealtime s[90:91]\ns_waitcnt lgkmcnt(0)\ns_mov_b32 s79, s90")
    stamp(A)
    for l in reads(0): A(l)
    CS = F[0]; PR = F[0] + 32
    for c in range(16):
        A("s_waitcnt lgkmcnt(0)")
        if c < 15:
            if c in (0, 1, 2, 3, 7, 11, 12): stamp(A)
            if c <= 12: A("s_barrier")
            if c in (0, 1, 2, 3, 7, 11, 12): stamp(A)
            L = reads(c + 1)
        else:
            L = [f"ds_read_b128 {v(CS+16*m+4*a,4)}, v14 offset:{512*m + 64*a}" for m in range(2) for a in range(4)]
            L += [f"ds_read_b128 {v(PR+4*i,4)}, v15 offset:{256*i}" for i in range(4)]
        f = F[c & 1]
        for a in range(4):
            for m in range(2):
                for i in range(4):
                    d = v(ACC + 64*m + 16*a + 4*i, 4)
                    A(f"v_mfma_f32_16x16x32_bf16 {d}, {v(f+16+16*m+4*a,4)}, {v(f+4*i,4)}, {'0' if c == 0 else d}")
                    if L: A(L.pop(0))
        assert not L
    stamp(A)
    A("s_waitcnt lgkmcnt(0)")
    stamp(A)
    if B16E: A("s_barrier")
    A(f"""
    s_lshl_b32 s28, s2, 7
    s_add_u32 s28, s28, {hx(FLG)}
    v_mov_b32 v2, s28
    v_mov_b32 v3, 1
    s_lshr_b32 s28, s2, 5
    s_lshl_b32 s29, s20, 3
    s_add_u32 s62, s28, s29
    """)
    if DIAG2: A("s_memrealtime s[90:91]\ns_waitcnt lgkmcnt(0)\ns_mov_b32 s80, s90")
    TM = F[1]
    for ks in range(2):
        for i in range(4):
            n = 4 * ks + i
            t = TM + 8 * (n & 1)
            o = TM + 16 + 4 * (n & 3)
            G = [ACC + 16 * (2 * ks + e) + 4 * i for e in range(2)]
            pairs = [(G[e] + 2 * h, CS + 4 * (2 * ks + e) + 2 * h, t + 4 * e + 2 * h) for e in range(2) for h in range(2)]
            P0 = v(PR + 4 * i, 2); P1 = v(PR + 4 * i + 2, 2)
            for g, cs, tt in pairs: A(f"v_pk_fma_f32 {v(g,2)}, {v(cs,2)}, {P0}, {v(g,2)} op_sel_hi:[1,0,1]")
            for g, cs, tt in pairs: A(f"v_pk_mul_f32 {v(tt,2)}, {v(g,2)}, {P1} op_sel_hi:[1,0]")
            for r in range(8): A(f"v_exp_f32 v{t+r}, v{t+r}")
            for g, cs, tt in pairs: A(f"v_pk_fma_f32 {v(g+64,2)}, {v(cs+16,2)}, {P0}, {v(g+64,2)} op_sel_hi:[1,0,1]")
            for g, cs, tt in pairs: A(f"v_pk_fma_f32 {v(tt,2)}, {v(tt,2)}, {P1}, {P1} op_sel:[0,1,1] op_sel_hi:[1,1,1]")
            for r in range(8): A(f"v_rcp_f32 v{t+r}, v{t+r}")
            for g, cs, tt in pairs: A(f"v_pk_mul_f32 {v(g,2)}, {v(g,2)}, {v(g+64,2)}")
            for g, cs, tt in pairs: A(f"v_pk_mul_f32 {v(g,2)}, {v(g,2)}, {v(tt,2)}")
            for k, (g, cs, tt) in enumerate(pairs): A(f"v_cvt_pk_bf16_f32 v{o+k}, v{g}, v{g+1}")
            for k in range(4): A(f"v_min_u32 v{o+k}, -2, v{o+k}")
            A(f"global_store_dwordx4 v16, {v(o,4)}, s[{42+2*i}:{43+2*i}] offset:{1024*ks} {ACT_ST}")
            if n == WAKEN:
                A("""
                s_cmp_lg_u32 s62, 1
                s_cbranch_scc1 K3_NWK
                s_mov_b64 exec, 1
                global_store_dword v2, v3, s[14:15] sc1
                s_mov_b64 exec, -1
                """)
                A.label("K3_NWK")
    stamp(A)
    A.label("K3_P2")
    AC = 16; WF = [48, 64, 80]; AR = 96; NAR = 8; WA = 160; HA = 172; HH = 176; HU = 184; XR = 200
    A(f"""
    s_and_b32 s26, s20, 1
    s_lshr_b32 s27, s20, 1
    s_lshl_b32 s30, s26, 1
    s_add_u32 s30, s30, s27
    s_xor_b32 s31, s30, 1
    v_lshrrev_b32 v8, 2, v1
    v_and_b32 v9, 3, v1
    v_bfe_u32 v10, v1, 3, 2
    v_lshlrev_b32 v8, 7, v8
    v_lshl_add_u32 v8, v9, 3, v8
    s_lshl_b32 s28, s27, 12
    v_add_u32 v12, s28, v8
    """)
    for a_ in range(4):
        A(f"v_xor_b32 v11, {a_}, v10\nv_lshl_add_u32 v{WA+a_}, v11, 5, v12")
        A(f"v_add_u32 v{WA+4+a_}, 0x10000, v{WA+a_}\nv_add_u32 v{WA+8+a_}, 0x20000, v{WA+a_}")
    XOFF = [SLOT[10] * 8192, SLOT[11] * 8192]
    A(f"""
    v_xor_b32 v11, s30, v10
    v_lshl_add_u32 v11, v11, 5, v8
    v_add_u32 v{HA}, {HTL}, v11
    v_lshlrev_b32 v13, 4, v1
    s_mul_i32 s28, s30, {56*1024}
    s_lshl_b32 s29, s27, 11
    s_add_u32 s28, s28, s29
    v_add_u32 v4, s28, v13
    s_mul_i32 s28, s31, {56*1024}
    s_add_u32 s28, s28, s29
    v_add_u32 v5, s28, v13
    s_mul_i32 s29, s60, {4*56*1024}
    s_add_u32 s29, s29, {hx(ACT)}
    s_add_u32 s40, s14, s29
    s_addc_u32 s41, s15, 0
    s_mov_b32 s42, {4*56*1024}
    s_mov_b32 s43, 0x20000
    s_mul_i32 s28, s26, {XOFF[1] - XOFF[0]}
    s_add_u32 s28, s28, {XOFF[0]}
    s_lshl_b32 s29, s27, 12
    s_add_u32 s32, s28, s29
    v_add_u32 v14, s32, v13
    s_xor_b32 s29, s29, 4096
    s_add_u32 s32, s28, s29
    v_add_u32 v15, s32, v13
    s_lshl_b32 s28, s60, 2
    s_add_u32 s28, s28, s30
    s_lshl_b32 s28, s28, 14
    s_lshl_b32 s29, s61, 7
    s_add_u32 s28, s28, s29
    v_and_b32 v10, 15, v1
    v_bfe_u32 v11, v1, 4, 1
    v_lshrrev_b32 v12, 5, v1
    v_lshlrev_b32 v7, 10, v10
    v_lshl_add_u32 v7, v11, 5, v7
    v_lshl_add_u32 v7, v12, 4, v7
    v_add_u32 v7, s28, v7
    """)
    stamp(A)
    if not B16E: A("s_barrier")
    A(f"""
    s_cmp_ge_u32 s2, 32
    s_cbranch_scc1 K3_SP5
    s_lshl_b32 s28, s2, 7
    s_add_u32 s28, s28, {hx(FLG + 4096)}
    v_mov_b32 v2, s28
    """)
    A.label("K3_WK")
    A("""
    s_sleep 3
    global_load_dword v3, v2, s[14:15] sc1
    s_waitcnt vmcnt(0)
    v_cmp_eq_u32 vcc, 0, v3
    s_cbranch_vccnz K3_WK
    """)
    A.label("K3_SP5")
    stamp(A)
    def wreads(c):
        sl = SLOT[c]; win = sl // 8
        return [f"ds_read_b64_tr_b16 {v(WF[c%3]+4*a_+2*kk,2)}, v{WA+4*win+a_} offset:{(sl%8)*8192 + 2048*kk}"
                for a_ in range(4) for kk in range(2)]
    vq = []
    def aload(c, q=True):
        A(f"s_mov_b32 s36, {kstep(c, 0) * 1024}")
        for i in range(2):
            A(f"buffer_load_dwordx4 {v(AR+8*(c%NAR)+4*i,4)}, v{4+i}, s[40:43], s36 offen sc1")
            if q: vq.append(c)
    def vleft(tag): return len(vq) - 1 - max(k for k, x in enumerate(vq) if x == tag)
    def check(c):
        r = AR + 8 * (c % NAR)
        return [f"v_max3_u32 v8, v{r}, v{r+1}, v{r+2}", f"v_max3_u32 v9, v{r+3}, v{r+4}, v{r+5}",
                f"v_max3_u32 v8, v8, v{r+6}, v{r+7}", "v_max_u32 v8, v8, v9", "v_cmp_eq_u32 vcc, -1, v8"]
    for c in range(LA): aload(c)
    for a_ in range(4): A(f"ds_read_b64_tr_b16 {v(HH+2*a_,2)}, v{HA} offset:{2048*a_}")
    for l in wreads(0) + wreads(1): A(l)
    A("s_waitcnt lgkmcnt(15)")
    for k in range(8): A(f"v_lshlrev_b32 v{HU+2*k}, 16, v{HH+k}\nv_and_b32 v{HU+2*k+1}, s37, v{HH+k}")
    stamp(A)
    A(f"s_waitcnt vmcnt({vleft(0)})")
    for l in check(0): A(l)
    for c in range(28):
        A(f"s_cbranch_vccnz K3_RT{c}")
        A.label(f"K3_OK{c}")
        A(f"s_waitcnt lgkmcnt({8 if c < 27 else 0})")
        if c == 0 or c == 14: stamp(A)
        if c in (5, 11, 16): A("s_barrier")
        L = wreads(c + 2) if c < 26 else []
        if c + LA < 28: aload(c + LA)
        m = 0
        for i in (1, 0):
            for a_ in range(4):
                d = v(AC + 16 * i + 4 * a_, 4)
                A(f"v_mfma_f32_16x16x32_bf16 {d}, {v(WF[c%3]+4*a_,4)}, {v(AR+8*(c%NAR)+4*i,4)}, {'0' if c == 0 else d}")
                m += 1
                if L: A(L.pop(0))
                if m == 5 and c < 27:
                    while L: A(L.pop(0))
                    A(f"s_waitcnt vmcnt({vleft(c + 1)})")
                    C = check(c + 1)
                    A(C.pop(0)); A(C.pop(0))
                if m == 6 and c < 27: A(C.pop(0)); A(C.pop(0))
                if m == 7 and c < 27: A(C.pop(0))
    stamp(A)
    for a_ in range(4): A(f"ds_write_b128 v15, {v(AC+16+4*a_,4)} offset:{1024*a_}")
    A("s_waitcnt lgkmcnt(0)\ns_barrier")
    for a_ in range(4): A(f"ds_read_b128 {v(XR+4*a_,4)}, v14 offset:{1024*a_}")
    R = 48
    for a_ in range(4):
        A(f"s_waitcnt lgkmcnt({3-a_})")
        for h in range(2): A(f"v_pk_add_f32 {v(AC+4*a_+2*h,2)}, {v(AC+4*a_+2*h,2)}, {v(XR+4*a_+2*h,2)}")
    for q in range(8): A(f"v_cvt_pk_bf16_f32 v{R+q}, v{AC+2*q}, v{AC+2*q+1}")
    for q in range(8): A(f"v_lshlrev_b32 v{AC+2*q}, 16, v{R+q}\nv_and_b32 v{AC+2*q+1}, s37, v{R+q}")
    for q in range(8): A(f"v_pk_add_f32 {v(AC+2*q,2)}, {v(AC+2*q,2)}, {v(HU+2*q,2)}")
    for q in range(8): A(f"v_cvt_pk_bf16_f32 v{R+q}, v{AC+2*q}, v{AC+2*q+1}")
    for i in range(2):
        for h in range(2): A(f"v_permlane16_swap_b32 v{R+4*i+h}, v{R+4*i+2+h}")
        A(f"global_store_dwordx4 v7, {v(R+4*i,4)}, s[18:19] offset:{64*i}")
    if STAMP: A("s_waitcnt vmcnt(0)")
    stamp(A); stamp_rt(A)
    stamp_flush(A, 2, wsreg=14)
    if DIAG2: A("s_waitcnt vmcnt(0)")
    if DIAG2: A("s_memrealtime s[90:91]\ns_waitcnt lgkmcnt(0)\ns_mov_b32 s83, s90")
    d2flush(A, [8, 9, 10, 11, 12, 13], 12, 0)
    diag_end(A, 2, 32, 0)
    diag_end(A, 2, 255, 1)
    A.label("K3_END")
    A("s_endpgm")
    for c in range(28):
        A.label(f"K3_RT{c}")
        A("s_sleep 2")
        aload(c, False)
        A("s_waitcnt vmcnt(0)")
        for l in check(c): A(l)
        A(f"s_cbranch_vccnz K3_RT{c}\ns_branch K3_OK{c}")
```

```python
import sys
import common
common.NKERN = 2
from common import *
import k12, k3
HDR = open("sequential_preLN__ssm_conv_s4d__swiglu_ffn__prompt.s.ref").read().split("; Override")[0]
def main(out):
    A = Asm()
    k12.k12(A); k3.k3(A)
    txt = HDR
    txt += f"; @launch kernel=k12_kernel grid=(256,1,1) block=(512,1,1) lds={k12.K12_LDS}\n"
    txt += f"; @launch kernel=k3_kernel grid=(256,1,1) block=(512,1,1) lds={k3.K3_LDS}\n"
    txt += '.amdgcn_target "amdgcn-amd-amdhsa--gfx950"\n.text\n'
    txt += A.finish()
    txt += '.section .rodata,"a"\n'
    txt += kernel_desc("k12_kernel", 256) + kernel_desc("k3_kernel", 256)
    open(out, "w").write(txt)
main(sys.argv[1])
```

```python
from asmlib import *
import numpy as np
XT   = 0x0000000
UT   = 0x0200000
KG   = 0x0400000
HT   = 0x0800000
ACT  = 0x0A00000
KSC  = 0x1100000
CSUM = 0x1120000
FLG  = 0x1104000
AFL  = 0x1140000
INB  = 0x0000000
PARG = 0x1108000
KTAB = KG
L2E = 1.4426950408889634
L2E_HI = float(np.float32(L2E)); L2E_LO = float(np.float32(L2E - L2E_HI))
I2P = 0.15915494309189535
I2P_HI = float(np.float32(I2P)); I2P_LO = float(np.float32(I2P - I2P_HI))
LN2 = 0.6931471805599453

def kernel_head(A, name):
    A(f".globl {name}\n.p2align 8\n.type {name},@function")
    A.label(name)

def kernel_desc(name, vgpr, sgpr=100):
    acc = (vgpr + 3) // 4 * 4
    acc = min(acc, 256)
    return f""".p2align 6
.amdhsa_kernel {name}
  .amdhsa_next_free_vgpr {vgpr}
  .amdhsa_next_free_sgpr {sgpr}
  .amdhsa_accum_offset {acc}
  .amdhsa_group_segment_fixed_size 0
  .amdhsa_kernarg_size 112
  .amdhsa_user_sgpr_count 2
  .amdhsa_user_sgpr_kernarg_segment_ptr 1
  .amdhsa_system_sgpr_workgroup_id_x 1
.end_amdhsa_kernel
"""

def addr64(A, d, base, off):
    o = hx(off) if isinstance(off, int) else off
    A(f"s_add_u32 s{d}, s{base}, {o}")
    A(f"s_addc_u32 s{d+1}, s{base+1}, 0")

def srd(A, d, base, off, nbytes):
    if off == 0:
        A(f"s_mov_b32 s{d}, s{base}\ns_mov_b32 s{d+1}, s{base+1}")
    else:
        addr64(A, d, base, off)
    A(f"s_mov_b32 s{d+2}, {hx(nbytes)}\ns_mov_b32 s{d+3}, 0x20000")

def dpp_reduce(A, op, regs):
    for m in ["row_shr:1 row_mask:0xf", "row_shr:2 row_mask:0xf", "row_shr:4 row_mask:0xf", "row_shr:8 row_mask:0xf",
              "row_bcast:15 row_mask:0xa", "row_bcast:31 row_mask:0xc"]:
        for r in regs:
            A(f"{op}_dpp v{r}, v{r}, v{r} {m} bank_mask:0xf")

import os
STAMP = int(os.environ.get("STAMP", "0"))
STAMP_OFF = 0x2000000
_st = {"n": 0}
def stamp_reset(): _st["n"] = 0
def stamp(A):
    if not STAMP: return
    n = _st["n"]; _st["n"] += 1
    assert n < 30
    A(f"s_memtime s[98:99]\ns_waitcnt lgkmcnt(0)\ns_mov_b32 s{64+n}, s98")
def stamp_rt(A):
    if not STAMP: return
    n = _st["n"]; _st["n"] += 1
    A(f"s_memrealtime s[98:99]\ns_waitcnt lgkmcnt(0)\ns_mov_b32 s{64+n}, s98")
def stamp_flush(A, kidx, wsreg=16, wave="s20", n=None):
    if not STAMP: return
    n = _st["n"] if n is None else n
    A(f"""
    s_lshl_b32 s96, s2, 3
    s_add_u32 s96, s96, {wave}
    s_lshl_b32 s96, s96, 7
    s_add_u32 s96, s96, {hx(STAMP_OFF + kidx * 0x100000)}
    s_add_u32 s96, s{wsreg}, s96
    s_addc_u32 s97, s{wsreg+1}, 0
    s_mov_b64 exec, 1
    v_mov_b32 v0, 0
    """)
    for i in range(n):
        A(f"v_mov_b32 v1, s{64+i}\nglobal_store_dword v0, v1, s[96:97] offset:{4*i}")

NKERN = 3
DIAG = int(os.environ.get("DIAG", "0"))
def diag_start(A):
    if not DIAG: return
    A("s_memrealtime s[94:95]\ns_load_dwordx2 s[92:93], s[0:1], 96")
def diag_end(A, kidx, wg, slot):
    if not DIAG: return
    l = A.newlabel("DG")
    A(f"""
    s_cmp_lg_u32 s2, {wg}
    s_cbranch_scc1 {l}
    s_cmp_lg_u32 s20, 0
    s_cbranch_scc1 {l}
    s_waitcnt vmcnt(0) lgkmcnt(0)
    s_memrealtime s[90:91]
    s_add_u32 s92, s92, {512*(NKERN-1-kidx)}
    s_addc_u32 s93, s93, 0
    s_waitcnt lgkmcnt(0)
    s_mov_b64 exec, 1
    v_mov_b32 v0, 0
    v_mov_b32 v2, s94
    v_mov_b32 v3, s90
    global_store_dwordx2 v0, v[2:3], s[92:93] offset:{16*kidx+8*slot}
    """)
    A.label(l)

PREF = int(os.environ.get("PREF", "14"))
P2MAP = int(os.environ.get("P2MAP", "1"))

DIAG2 = int(os.environ.get("DIAG2", "0"))
def d2(A, word, dbg, off, vt):
    if not DIAG2: return
    A(f"""
    s_memrealtime s[90:91]
    s_waitcnt lgkmcnt(0)
    s_mov_b64 s[88:89], exec
    s_mov_b64 exec, 1
    v_mov_b32 v{vt}, 0
    v_mov_b32 v{vt+1}, s90
    global_atomic_umax v{vt}, v{vt+1}, s[{dbg}:{dbg+1}] offset:{off + 4*word}
    s_mov_b64 exec, s[88:89]
    """)
def d2flush(A, words, dbg, off):
    if not DIAG2: return
    l = A.newlabel("D2")
    A(f"s_cmp_lg_u32 s2, 100\ns_cbranch_scc1 {l}\ns_and_b32 s90, s20, 3\ns_cmp_lg_u32 s90, 0\ns_cbranch_scc1 {l}")
    A("s_mov_b64 exec, 1\nv_mov_b32 v0, 0")
    for w in words:
        A(f"v_mov_b32 v1, s{70+w}\nglobal_store_dword v0, v1, s[{dbg}:{dbg+1}] offset:{off + 4*w}")
    A.label(l)
def rec(A, n):
    if DIAG2: A(f"s_memrealtime s[90:91]\ns_waitcnt lgkmcnt(0)\ns_mov_b32 s{70+n}, s90")

SPIN = os.environ.get("SPIN", "")
def mark(A, name):
    if not SPIN: return
    a, b = SPIN.split(":")
    if name == a: A("s_memrealtime s[90:91]\ns_waitcnt lgkmcnt(0)\ns_mov_b32 s86, s90")
    if name == b: A("s_memrealtime s[90:91]\ns_waitcnt lgkmcnt(0)\ns_mov_b32 s87, s90")
def spin_end(A):
    if not SPIN: return
    A("""
    s_sub_u32 s87, s87, s86
    s_min_u32 s87, s87, 5000
    s_memrealtime s[90:91]
    s_waitcnt lgkmcnt(0)
    s_mov_b32 s86, s90
SPIN_L:
    s_memrealtime s[90:91]
    s_waitcnt lgkmcnt(0)
    s_sub_u32 s90, s90, s86
    s_cmp_lt_u32 s90, s87
    s_cbranch_scc1 SPIN_L
    """)
```

```python
from common import *

NS = 6
RING = NS * 8192
HR, GR, UR = 0, RING, 2 * RING
PAR = 3 * RING
CSL = PAR + 2048
HTL = CSL + 1024
K3_LDS = HTL + 8192
PSLEEP = int(os.environ.get('PSLEEP', '4'))
FLAGA = int(os.environ.get('FLAGA', '6'))
RAMP = int(os.environ.get('RAMP', '16'))
HPRIO = int(os.environ.get('HPRIO', '3'))
HL0 = int(os.environ.get('HL0', '2'))
ROT = int(os.environ.get('ROT', '1'))
HB = int(os.environ.get('HB', '16'))
SPD = int(os.environ.get('SPD', '1'))
K3T = int(os.environ.get('K3T', '1'))
B16E = int(os.environ.get('B16E', '1'))
WAKEN = int(os.environ.get('WAKEN', '2'))
AB = 1
LA = int(os.environ.get('LA', '7'))
SLOT = {}
for i in range(6):
    for l in range(3): SLOT[3*i+l] = 6*l + (10+i) % 6
for c in range(18, 28): SLOT[c] = SLOT[c-18]
def kstep(m, half): return 4 * m + 2 * half if m < 14 else 4 * (m - 14) + 1 + 2 * half

ACT_ST = "sc1"
def look(c): return 2 if c < 3 else (3 if c < 8 else 4)

def wd_setup(A):
    A(f"""
    v_lshrrev_b32 v29, 3, v1
    v_and_b32 v30, 7, v1
    v_and_b32 v31, 2, v29
    v_lshlrev_b32 v31, 1, v31
    v_xor_b32 v30, v30, v31
    v_bfe_u32 v31, v29, 2, 1
    v_lshlrev_b32 v31, 1, v31
    v_xor_b32 v30, v30, v31
    v_lshlrev_b32 v31, 10, v29
    v_lshl_add_u32 v24, v30, 4, v31
    v_add_u32 v25, 7168, v24
    v_add_u32 v26, {2*7168}, v24
    v_add_u32 v27, {3*7168}, v24
    s_lshl_b32 s35, s61, 7
    s_add_u32 s44, s16, s35
    s_addc_u32 s45, s17, 0
    s_sub_u32 s46, {1792*1024}, s35
    s_mov_b32 s47, 0x20000
    s_lshl_b32 s35, s26, 17
    s_cmp_eq_u32 s26, 2
    s_cselect_b32 s38, {55*32768}, 0
    s_sub_u32 s38, s35, s38
    v_lshl_add_u32 v28, v1, 4, s29
    """)

def k3(A):
    P2M = ["""s_lshl_b32 s60, s21, 2
    s_and_b32 s61, s22, 3
    s_or_b32 s60, s60, s61
    s_lshr_b32 s61, s22, 2""", """s_lshr_b32 s60, s21, 1
    s_lshl_b32 s60, s60, 3
    s_and_b32 s61, s22, 7
    s_or_b32 s60, s60, s61
    s_and_b32 s61, s21, 1
    s_lshl_b32 s61, s61, 2
    s_lshr_b32 s62, s22, 3
    s_or_b32 s61, s61, s62"""][P2MAP]
    A.label("FFN_ENTRY")
    A(f"""
    s_setprio 0
    s_mov_b64 exec, -1
    v_mbcnt_lo_u32_b32 v1, -1, 0
    v_mbcnt_hi_u32_b32 v1, -1, v1
    s_lshl_b32 s21, s20, 6
    v_add_u32 v0, s21, v1
    s_mov_b64 s[8:9], s[44:45]
    s_mov_b64 s[10:11], s[46:47]
    s_mov_b64 s[12:13], s[52:53]
    s_mov_b64 s[14:15], s[54:55]
    s_mov_b64 s[16:17], s[48:49]
    s_mov_b64 s[18:19], s[50:51]
    s_and_b32 s21, s2, 7
    s_lshr_b32 s22, s2, 3
    s_mov_b32 s37, 0xffff0000
    s_lshl_b32 s63, s21, {1 if ROT else 31}
    s_and_b32 s63, s63, 15
    {P2M}
    s_cmp_lt_u32 s22, 4
    s_cbranch_scc1 K3_SPARE
    s_sub_u32 s22, s22, 4
    s_lshr_b32 s23, s21, 1
    s_lshl_b32 s23, s23, 2
    s_and_b32 s24, s22, 3
    s_or_b32 s23, s23, s24
    s_and_b32 s24, s21, 1
    s_mul_i32 s24, s24, 7
    s_lshr_b32 s25, s22, 2
    s_add_u32 s24, s24, s25
    s_cmp_lt_u32 s20, 4
    s_cbranch_scc1 K3_COMP
    s_sub_u32 s26, s20, 4
    v_lshrrev_b32 v4, 4, v1
    v_and_b32 v5, 15, v1
    v_lshlrev_b32 v6, 1, v4
    v_xor_b32 v6, v6, v5
    v_xor_b32 v7, 8, v6
    s_cmp_eq_u32 s20, 7
    s_cbranch_scc1 K3_HELP
    s_cmp_eq_u32 s20, 4
    s_cbranch_scc1 K3_H0
    """)
    A("""
    v_mul_u32_u24 v9, 3584, v4
    v_lshl_add_u32 v6, v6, 4, v9
    v_lshl_add_u32 v7, v7, 4, v9
    """)
    for j in range(8): A(f"v_add_u32 v{16+j}, {4*3584*j - (j & 3) * 1024}, v{6 + (j & 1)}")
    A(f"""
    s_mul_i32 s29, s26, {RING}
    s_lshl_b32 s31, s24, 8
    s_cmp_eq_u32 s26, 1
    s_cselect_b32 s40, s8, s10
    s_cselect_b32 s41, s9, s11
    s_add_u32 s40, s40, s31
    s_addc_u32 s41, s41, 0
    s_sub_u32 s42, {512*3584}, s31
    s_mov_b32 s43, 0x20000
    """)
    def issue1(k):
        c, j = divmod(k, 8)
        A(f"s_add_u32 m0, s29, {(c % NS) * 8192 + 1024 * (j & 4)}")
        if j == 0: A(f"s_add_u32 s33, s63, {c}\ns_and_b32 s33, s33, 15\ns_mul_i32 s33, s33, {32 * 3584}")
        A(f"buffer_load_dwordx4 v{16+j}, s[40:43], s33 offen offset:{1024*(j&3)} lds")
    order = []
    for k in range(24): issue1(k); order.append(k // 8)
    wd_setup(A)
    HR_ = 32
    def src(m0, half):
        if m0 + 2 < 14 or m0 >= 14: A(f"s_add_u32 s36, s35, {kstep(m0, half) * 32768}")
        else: A(f"s_add_u32 s36, s38, {kstep(m0, half) * 32768}")
    def held(k):
        i, j = divmod(k, 8)
        if j % 4 == 0: src(18 + 3 * i, j >> 2)
        A(f"buffer_load_dwordx4 {v(HR_+4*k,4)}, v{24+(j&3)}, s[44:47], s36 offen offset:{1024*(j&3)}")
    def waitc(c):
        idx = max(k for k, x in enumerate(order) if x == c)
        A(f"s_waitcnt vmcnt({len(order) - 1 - idx})")
    def wd_dma(i):
        for j in range(8):
            if j % 4 == 0:
                A(f"s_add_u32 m0, s29, {((10 + i) % 6) * 8192 + 1024 * j}")
                src(3 * i, j >> 2)
            A(f"buffer_load_dwordx4 v{24+(j&3)}, s[44:47], s36 offen offset:{1024*(j&3)} lds")
    A("s_barrier")
    nk = 24
    for c in range(12):
        waitc(c)
        A("s_barrier")
        tgt = min(128, 24 + (c + 1) * 8 + max(0, c - 3)) if c < 11 else 128
        while nk < tgt:
            assert nk // 8 - NS <= c - 1
            issue1(nk); order.append(nk // 8); nk += 1
    waitc(12)
    A("s_barrier")
    wd_dma(0); order += ["w"] * 8
    waitc(15)
    A("s_barrier")
    A("s_branch K3_LT13")

    retry = []
    def hloop(hh, hook):
        A(f"""
        v_lshlrev_b32 v9, 12, v4
        v_lshl_add_u32 v6, v6, 4, v9
        v_lshl_add_u32 v7, v7, 4, v9
        """)
        for j in range(4): A(f"v_add_u32 v{16+j}, {(16*hh + 4*j) * 4096 - 1024*j}, v{6 + (j & 1)}")
        A(f"""
        v_lshlrev_b32 v20, 4, v1
        v_add_u32 v20, {4096*hh}, v20
        s_lshl_b32 s28, s23, 8
        s_add_u32 s30, s28, {hx(HT)}
        s_add_u32 s40, s14, s30
        s_addc_u32 s41, s15, 0
        s_sub_u32 s42, 0x200000, s28
        s_mov_b32 s43, 0x20000
        """)
        q = []
        r = 128
        def ld(c):
            return [f"s_mov_b32 m0, {(c % NS) * 8192 + 4096 * hh}", f"s_add_u32 s33, s63, {c}", "s_and_b32 s33, s33, 15", "s_lshl_b32 s33, s33, 17"] + \
                   [f"buffer_load_dwordx4 v{16+j}, s[40:43], s33 offen offset:{1024*j} sc1 lds" for j in range(4)]
        def chk(c):
            return [f"ds_read_b128 {v(r+4*j,4)}, v20 offset:{(c % NS) * 8192 + 1024*j}" for j in range(4)] + \
                   ["s_waitcnt lgkmcnt(2)", f"v_max3_u32 v21, v{r}, v{r+2}, v{r+4}", "s_waitcnt lgkmcnt(0)", f"v_max3_u32 v22, v{r+8}, v{r+10}, v{r+12}",
                    f"v_max3_u32 v21, v21, v{r+6}, v{r+14}", "v_max_u32 v21, v21, v22", "v_cmp_eq_u32 vcc, -1, v21"]
        def load(c):
            for l in ld(c): A(l)
            q.extend([c] * 4)
        def left(tag): return len(q) - 1 - max(k for k, x in enumerate(q) if x == tag)
        A("s_barrier")
        nl = 0
        while nl < HL0: load(nl); nl += 1
        done = -1
        A(f"s_setprio {HPRIO}")
        for c in range(14):
            T = min(15, c if c <= 1 else (c + 1 if c <= 8 else c + 2))
            while done < T:
                done += 1
                A(f"s_waitcnt vmcnt({left(done)})")
                for l in chk(done): A(l)
                A(f"s_cbranch_vccnz K3_HR{hh}_{done}")
                A.label(f"K3_HO{hh}_{done}")
                retry.append((f"K3_HR{hh}_{done}", f"K3_HO{hh}_{done}", ld(done), chk(done)))
            A("s_barrier")
            while nl <= min(15, c + (3 if c < 1 else 4 if c < 5 else 5)):
                assert nl - NS <= c - 1
                load(nl); nl += 1
            hook(c, q)
        A("s_setprio 0")
    A.label("K3_H0")
    A("s_mov_b32 s29, 0")
    wd_setup(A)
    hloop(0, lambda c, q: None)
    A.label("K3_LT13A")
    wd_dma(0)
    A.label("K3_LT13")
    wd_dma(1); wd_dma(2)
    for k in range(HB): held(k)
    A(f"s_waitcnt vmcnt({HB})")
    A("s_barrier")
    wd_dma(3); wd_dma(4); wd_dma(5)
    for k in range(HB, 24): held(k)
    A("s_waitcnt vmcnt(0)")
    A("s_barrier")
    for i in range(2):
        for j in range(8): A(f"ds_write_b128 v28, {v(HR_+32*i+4*j,4)} offset:{((10+i)%6)*8192 + 1024*j}")
    A("s_barrier")
    for j in range(8): A(f"ds_write_b128 v28, {v(HR_+64+4*j,4)} offset:{((10+2)%6)*8192 + 1024*j}")
    A("s_waitcnt lgkmcnt(0)")
    A("s_barrier")
    A("s_endpgm")

    def ht_setup():
        A("s_mov_b32 s26, 0\ns_mov_b32 s29, 0")
        wd_setup(A)
        A(f"""
        v_lshlrev_b32 v31, 12, v29
        v_lshl_add_u32 v12, v30, 4, v31
        v_add_u32 v13, {8*4096 - 1024}, v12
        v_add_u32 v14, {2*(8*4096 - 1024)}, v12
        v_add_u32 v15, {3*(8*4096 - 1024)}, v12
        s_lshl_b32 s30, s61, 18
        s_lshl_b32 s31, s60, 7
        s_add_u32 s30, s30, s31
        s_add_u32 s31, s30, {hx(HT)}
        s_add_u32 s48, s14, s31
        s_addc_u32 s49, s15, 0
        s_sub_u32 s50, 0x200000, s30
        s_mov_b32 s51, 0x20000
        s_lshl_b32 s30, s60, 7
        s_add_u32 s30, s30, {hx(FLG)}
        v_mov_b32 v2, s30
        """)
    A.label("K3_HELP")
    ht_setup()
    A(f"""
    s_lshl_b32 s30, s23, 8
    s_add_u32 s30, s30, {hx(FLG)}
    v_writelane_b32 v2, s30, 1
    s_add_u32 s30, s30, 128
    v_writelane_b32 v2, s30, 2
    s_lshl_b32 s27, s23, 11
    s_add_u32 s27, s27, {hx(PARG)}
    v_lshlrev_b32 v3, 4, v1
    v_add_u32 v10, {PAR}, v3
    v_add_u32 v11, s27, v3
    v_lshrrev_b32 v8, 5, v1
    v_mul_u32_u24 v8, {1792*4 - 512}, v8
    s_lshl_b32 s28, s24, 9
    s_add_u32 s28, s28, {hx(CSUM)}
    v_add3_u32 v8, v8, v3, s28
    """)
    def hhook(c, q):
        if c == 5 and K3T:
            A(f"""
            v_and_b32 v48, 7, v1
            s_lshl_b32 s30, s23, 3
            v_add_u32 v48, s30, v48
            v_mul_u32_u24 v48, {56*1024}, v48
            s_lshl_b32 s30, s24, 12
            s_add_u32 s30, s30, {hx(ACT)}
            v_add_u32 v48, s30, v48
            s_lshl_b32 s30, s60, 16
            v_mov_b32 v49, s30
            s_mov_b64 exec, 0xff
            global_load_dword v50, v48, s[14:15]
            s_mov_b64 exec, 1
            global_load_dword v50, v49, s[18:19]
            s_mov_b64 exec, -1
            """)
            q.extend(["t", "t"])
        if c == 9:
            A("global_load_dword v23, v2, s[14:15] sc1"); q.append("f")
        if c == 11:
            A(f"s_waitcnt vmcnt({len(q) - 1 - q.index('f')})")
            A.label("K3_POLL")
            A("""
            v_cmp_eq_u32 vcc, 0, v23
            s_cbranch_vccz K3_GOT
            s_sleep 4
            global_load_dword v23, v2, s[14:15] sc1
            s_waitcnt vmcnt(0)
            s_branch K3_POLL
            """)
            A.label("K3_GOT")
            for k in range(8):
                A(f"global_load_dwordx4 {v(64+4*k,4)}, v8, s[14:15] sc1")
                if k < 7: A(f"v_add_u32 v8, {3584*4}, v8")
            A("""
            global_load_dwordx4 v[96:99], v11, s[14:15] sc1
            global_load_dwordx4 v[100:103], v11, s[14:15] offset:1024 sc1
            """)
            q.extend(["p"] * 10)
        if c == 12:
            ht_tile(); q.extend(["h"] * 8)
    def ht_tile():
        for j in range(8):
            if j % 4 == 0: A(f"s_mov_b32 m0, {HTL + 1024*j}\ns_mov_b32 s36, {(j >> 2) * 32 * 4096}")
            A(f"buffer_load_dwordx4 v{12+(j&3)}, s[48:51], s36 offen offset:{1024*(j&3)} sc1 lds")
    def ht_c27():
        for j in range(8):
            if j % 4 == 0: A(f"s_mov_b32 s36, {kstep(27, j >> 2) * 32768}")
            A(f"buffer_load_dwordx4 {v(32+4*j,4)}, v{24+(j&3)}, s[44:47], s36 offen offset:{1024*(j&3)}")
    hloop(1, hhook)
    A("s_waitcnt vmcnt(8)")
    for st in (16, 8, 4):
        for i in range(st): A(f"v_add_f32 v{64+i}, v{64+i}, v{64+st+i}")
    A("""
    ds_write_b128 v10, v[64:67] offset:2048
    ds_write_b128 v10, v[96:99]
    ds_write_b128 v10, v[100:103] offset:1024
    """)
    A.label("K3_HT2")
    A("s_waitcnt vmcnt(0) lgkmcnt(0)\ns_barrier")
    ht_c27()
    A("""
    s_barrier
    s_barrier
    s_waitcnt vmcnt(0)
    """)
    for j in range(8): A(f"ds_write_b128 v28, {v(32+4*j,4)} offset:{SLOT[27]*8192 + 1024*j}")
    A("""
    s_waitcnt lgkmcnt(0)
    s_barrier
    s_endpgm
    """)

    A.label("K3_SPARE")
    A(f"""
    s_lshl_b32 s23, s21, 2
    s_add_u32 s23, s23, s22
    v_lshrrev_b32 v2, 3, v1
    v_and_b32 v3, 7, v1
    v_lshlrev_b32 v4, 12, v2
    v_lshl_add_u32 v4, v3, 4, v4
    s_lshl_b32 s24, s20, 18
    s_lshl_b32 s25, s23, 7
    s_add_u32 s24, s24, s25
    s_add_u32 s24, s24, {hx(HT)}
    s_add_u32 s40, s14, s24
    s_addc_u32 s41, s15, 0
    s_mov_b32 s42, {64*4096}
    s_mov_b32 s43, 0x20000
    v_lshrrev_b32 v5, 2, v1
    v_and_b32 v6, 3, v1
    v_lshlrev_b32 v5, 10, v5
    v_lshl_add_u32 v5, v6, 7, v5
    s_mul_i32 s24, s22, {448*1024}
    s_mul_i32 s25, s20, {56*1024}
    s_add_u32 s24, s24, s25
    s_and_b32 s25, s21, 1
    s_lshl_b32 s25, s25, 9
    s_add_u32 s24, s24, s25
    s_add_u32 s52, s16, s24
    s_addc_u32 s53, s17, 0
    s_sub_u32 s54, {1792*1024}, s24
    s_min_u32 s54, s54, {56*1024}
    s_mov_b32 s55, 0x20000
    s_waitcnt vmcnt(0)
    s_barrier
    """)
    for j in range(SPD):
        A(f"s_mov_b32 s26, {16*1024*j}")
        A(f"buffer_load_dword v{8+j}, v5, s[52:55], s26 offen")
    if SPD: A("s_waitcnt vmcnt(0)")
    A.label("K3_SPL")
    for j in range(8):
        A(f"s_mov_b32 s26, {0x8000*j}")
        A(f"buffer_load_dwordx4 {v(16+4*j,4)}, v4, s[40:43], s26 offen sc1")
    for k in range(16): A(f"v_mov_b32 v{48+k}, 0")
    A("v_mov_b32 v72, 0")
    for j in range(8):
        A(f"s_waitcnt vmcnt({7-j})")
        A(f"v_max3_u32 v72, v72, v{16+4*j}, v{18+4*j}")
        for k in range(4):
            A(f"v_lshlrev_b32 v{64+2*k}, 16, v{16+4*j+k}\nv_and_b32 v{65+2*k}, s37, v{16+4*j+k}")
        for k in range(4):
            A(f"v_pk_add_f32 {v(48+2*k,2)}, {v(48+2*k,2)}, {v(64+2*k,2)}")
            A(f"v_pk_fma_f32 {v(56+2*k,2)}, {v(64+2*k,2)}, {v(64+2*k,2)}, {v(56+2*k,2)}")
    A("v_cmp_eq_u32 vcc, -1, v72\ns_cbranch_vccnz K3_SPL")
    A(f"""
    v_lshrrev_b32 v6, 3, v0
    v_lshlrev_b32 v6, 9, v6
    v_lshl_add_u32 v6, v3, 5, v6
    ds_write_b128 v6, v[48:51]
    ds_write_b128 v6, v[52:55] offset:16
    ds_write_b128 v6, v[56:59] offset:256
    ds_write_b128 v6, v[60:63] offset:272
    s_lshl_b32 s24, s20, 12
    v_lshl_add_u32 v7, v1, 2, s24
    s_lshl_b32 s24, s20, 9
    s_add_u32 s24, s24, 32768
    v_lshl_add_u32 v12, v1, 3, s24
    v_lshlrev_b32 v13, 3, v1
    s_waitcnt lgkmcnt(0)
    s_barrier
    """)
    for p in range(8): A(f"ds_read2st64_b32 {v(16+2*p,2)}, v7 offset0:{2*p} offset1:{2*p+1}")
    A("s_waitcnt lgkmcnt(0)")
    for st in (8, 4, 2):
        for i in range(0, st, 2): A(f"v_pk_add_f32 {v(16+i,2)}, {v(16+i,2)}, {v(16+st+i,2)}")
    A("""
    ds_write_b64 v12, v[16:17]
    s_waitcnt lgkmcnt(0)
    s_barrier
    s_cmp_lg_u32 s20, 0
    s_cbranch_scc1 K3_SP2
    """)
    for p in range(8): A(f"ds_read_b64 {v(32+2*p,2)}, v13 offset:{32768 + 512*p}")
    A(f"""
    s_lshl_b32 s24, s23, 10
    s_add_u32 s24, s24, {hx(PARG)}
    s_add_u32 s40, s14, s24
    s_addc_u32 s41, s15, 0
    v_lshlrev_b32 v14, 4, v1
    s_lshl_b32 s24, s23, 7
    s_add_u32 s24, s24, {hx(FLG)}
    v_mov_b32 v15, s24
    s_waitcnt lgkmcnt(0)
    """)
    for st in (8, 4, 2):
        for i in range(0, st, 2): A(f"v_pk_add_f32 {v(32+i,2)}, {v(32+i,2)}, {v(32+st+i,2)}")
    A(f"""
    v_mul_f32 v32, {hx(f2u(1/512))}, v32
    v_mul_f32 v33, {hx(f2u(1/512))}, v33
    v_fma_f32 v33, -v32, v32, v33
    v_max_f32 v33, 0, v33
    v_cvt_pk_bf16_f32 v34, -v32, v33
    v_lshlrev_b32 v36, 16, v34
    v_and_b32 v34, s37, v34
    v_add_f32 v34, {hx(f2u(1e-5))}, v34
    v_cvt_pk_bf16_f32 v34, v34, v34
    v_lshlrev_b32 v34, 16, v34
    v_sqrt_f32 v34, v34
    v_cvt_pk_bf16_f32 v34, v34, v34
    v_lshlrev_b32 v34, 16, v34
    v_rcp_f32 v38, v34
    v_mul_f32 v39, v34, v34
    v_mov_b32 v37, 1
    v_mul_f32 v38, {hx(f2u(-L2E))}, v38
    global_store_dwordx4 v14, v[36:39], s[40:41] sc1
    s_waitcnt vmcnt(0)
    s_mov_b64 exec, 1
    global_store_dword v15, v37, s[14:15] sc1
    s_mov_b64 exec, -1
    """)
    A.label("K3_SP2")
    A("s_barrier")
    for j in range(SPD, 4):
        A(f"s_mov_b32 s26, {16*1024*j}")
        A(f"buffer_load_dword v{8+j}, v5, s[52:55], s26 offen")
    A(f"""
    s_waitcnt vmcnt(0)
    s_cmp_lt_u32 s20, 4
    s_cbranch_scc1 K3_SP3
    s_cmp_eq_u32 s20, 7
    s_cbranch_scc1 K3_SP4
    s_sub_u32 s26, s20, 4
    s_mul_i32 s29, s26, {RING}
    """)
    wd_setup(A)
    A("s_branch K3_LT13A")
    A.label("K3_SP4")
    ht_setup()
    A.label("K3_SPP")
    A("""
    global_load_dword v23, v2, s[14:15] sc1
    s_waitcnt vmcnt(0)
    v_cmp_eq_u32 vcc, 0, v23
    s_cbranch_vccz K3_SPG
    s_sleep 4
    s_branch K3_SPP
    """)
    A.label("K3_SPG")
    ht_tile()
    A("s_branch K3_HT2")
    A.label("K3_SP3")
    A("s_barrier")
    stamp_reset(); stamp_rt(A); stamp(A)
    for c in range(18): stamp(A)
    A("s_branch K3_P2")

    A.label("K3_COMP")
    if DIAG2: A("s_memrealtime s[90:91]\ns_waitcnt lgkmcnt(0)\ns_mov_b32 s78, s90")
    stamp_reset(); stamp_rt(A); stamp(A)
    ACC = 32; F = [160, 208]
    TA, GA, UA = 2, 6, 10
    A(f"""
    s_and_b32 s26, s20, 1
    s_lshr_b32 s27, s20, 1
    v_lshrrev_b32 v17, 2, v1
    v_and_b32 v18, 3, v1
    v_and_b32 v19, 7, v17
    v_lshlrev_b32 v20, 8, v17
    v_lshl_add_u32 v20, v18, 3, v20
    s_lshl_b32 s28, s26, 2
    s_lshl_b32 s30, s27, 2
    """)
    for i in range(4):
        A(f"""
        s_add_u32 s29, s28, {i}
        v_xor_b32 v21, s29, v19
        v_lshl_add_u32 v{TA+i}, v21, 5, v20
        s_add_u32 s29, s30, {i}
        v_xor_b32 v21, s29, v19
        v_lshl_add_u32 v21, v21, 5, v20
        v_add_u32 v{GA+i}, {GR}, v21
        v_add_u32 v{UA+i}, {UR}, v21
        """)
    A(f"""
    v_lshrrev_b32 v17, 4, v1
    v_and_b32 v18, 15, v1
    s_lshl_b32 s28, s27, 8
    s_add_u32 s28, s28, {CSL}
    v_lshl_add_u32 v14, v17, 4, s28
    s_lshl_b32 s29, s26, 10
    s_add_u32 s29, s29, {PAR}
    v_lshl_add_u32 v15, v18, 4, s29
    v_lshlrev_b32 v16, 4, v1
    s_lshl_b32 s29, s23, 3
    s_lshl_b32 s30, s26, 2
    s_add_u32 s29, s29, s30
    s_mul_i32 s29, s29, {56*1024}
    s_lshl_b32 s30, s24, 12
    s_add_u32 s29, s29, s30
    s_lshl_b32 s30, s27, 11
    s_add_u32 s29, s29, s30
    s_add_u32 s29, s29, {hx(ACT)}
    """)
    addr64(A, 42, 14, "s29")
    for i in range(1, 4): addr64(A, 42 + 2 * i, 40 + 2 * i, 56 * 1024)
    def reads(c):
        o = (c % NS) * 8192; f = F[c & 1]
        order = [("T", 0), ("G", 0), ("T", 1), ("T", 2), ("T", 3), ("U", 0)] + [(k, a) for a in range(1, 4) for k in "GU"]
        L = []
        for kind, x in order:
            for kk in range(2):
                base = {"T": TA, "G": GA, "U": UA}[kind]; ro = {"T": 0, "G": 16, "U": 32}[kind]
                L.append(f"ds_read_b64_tr_b16 {v(f+ro+4*x+2*kk,2)}, v{base+x} offset:{o + 4096*kk}")
        return L
    A("s_waitcnt vmcnt(0)")
    A("s_barrier")
    A("s_barrier")
    if DIAG2: A("s_memrealtime s[90:91]\ns_waitcnt lgkmcnt(0)\ns_mov_b32 s79, s90")
    stamp(A)
    for l in reads(0): A(l)
    CS = F[0]; PR = F[0] + 32
    for c in range(16):
        A("s_waitcnt lgkmcnt(0)")
        if c < 15:
            if c in (0, 1, 2, 3, 7, 11, 12): stamp(A)
            if c <= 12: A("s_barrier")
            if c in (0, 1, 2, 3, 7, 11, 12): stamp(A)
            L = reads(c + 1)
        else:
            L = [""] * 19 + ["s_barrier"]
            L += [f"ds_read_b128 {v(CS+16*m+4*a,4)}, v14 offset:{512*m + 64*a}" for m in range(2) for a in range(4)]
            L += [f"ds_read_b128 {v(PR+4*i,4)}, v15 offset:{256*i}" for i in range(4)]
        f = F[c & 1]
        for a in range(4):
            for m in range(2):
                for i in range(4):
                    d = v(ACC + 64*m + 16*a + 4*i, 4)
                    A(f"v_mfma_f32_16x16x32_bf16 {d}, {v(f+16+16*m+4*a,4)}, {v(f+4*i,4)}, {'0' if c == 0 else d}")
                    if L: A(L.pop(0))
        assert not L
    stamp(A)
    A("s_waitcnt lgkmcnt(0)")
    stamp(A)
    A(f"""
    s_lshl_b32 s28, s2, 7
    s_add_u32 s28, s28, {hx(FLG)}
    v_mov_b32 v2, s28
    v_mov_b32 v3, 1
    s_lshr_b32 s28, s2, 5
    s_lshl_b32 s29, s20, 3
    s_add_u32 s62, s28, s29
    """)
    if DIAG2: A("s_memrealtime s[90:91]\ns_waitcnt lgkmcnt(0)\ns_mov_b32 s80, s90")
    TM = F[1]
    for ks in range(2):
        for i in range(4):
            n = 4 * ks + i
            t = TM + 8 * (n & 1)
            o = TM + 16 + 4 * (n & 3)
            G = [ACC + 16 * (2 * ks + e) + 4 * i for e in range(2)]
            pairs = [(G[e] + 2 * h, CS + 4 * (2 * ks + e) + 2 * h, t + 4 * e + 2 * h) for e in range(2) for h in range(2)]
            P0 = v(PR + 4 * i, 2); P1 = v(PR + 4 * i + 2, 2)
            for g, cs, tt in pairs: A(f"v_pk_fma_f32 {v(g,2)}, {v(cs,2)}, {P0}, {v(g,2)} op_sel_hi:[1,0,1]")
            for g, cs, tt in pairs: A(f"v_pk_mul_f32 {v(tt,2)}, {v(g,2)}, {P1} op_sel_hi:[1,0]")
            for r in range(8): A(f"v_exp_f32 v{t+r}, v{t+r}")
            for g, cs, tt in pairs: A(f"v_pk_fma_f32 {v(g+64,2)}, {v(cs+16,2)}, {P0}, {v(g+64,2)} op_sel_hi:[1,0,1]")
            for g, cs, tt in pairs: A(f"v_pk_fma_f32 {v(tt,2)}, {v(tt,2)}, {P1}, {P1} op_sel:[0,1,1] op_sel_hi:[1,1,1]")
            for r in range(8): A(f"v_rcp_f32 v{t+r}, v{t+r}")
            for g, cs, tt in pairs: A(f"v_pk_mul_f32 {v(g,2)}, {v(g,2)}, {v(g+64,2)}")
            for g, cs, tt in pairs: A(f"v_pk_mul_f32 {v(g,2)}, {v(g,2)}, {v(tt,2)}")
            for k, (g, cs, tt) in enumerate(pairs): A(f"v_cvt_pk_bf16_f32 v{o+k}, v{g}, v{g+1}")
            for k in range(4): A(f"v_min_u32 v{o+k}, -2, v{o+k}")
            A(f"global_store_dwordx4 v16, {v(o,4)}, s[{42+2*i}:{43+2*i}] offset:{1024*ks} {ACT_ST}")
            if n == WAKEN:
                A("""
                s_cmp_lg_u32 s62, 1
                s_cbranch_scc1 K3_NWK
                s_mov_b64 exec, 1
                global_store_dword v2, v3, s[14:15] sc1
                s_mov_b64 exec, -1
                """)
                A.label("K3_NWK")
    stamp(A)
    rec(A, 11)
    A.label("K3_P2")
    mark(A, "p2")
    AC = 16; WF = [48, 64, 80]; WA = 96; HA = 108; HH = 112; HU = 120; XR = 64; AR = 136; NAR = LA + 2
    assert AR + 8 * NAR <= 256
    XOFF = [SLOT[10] * 8192, SLOT[11] * 8192]
    A(f"""
    s_and_b32 s26, s20, 1
    s_lshr_b32 s27, s20, 1
    v_lshrrev_b32 v12, 5, v1
    v_bfe_u32 v11, v1, 4, 1
    v_bfe_u32 v8, v1, 2, 2
    v_and_b32 v9, 3, v1
    v_and_or_b32 v10, v8, 2, v12
    v_xor_b32 v10, v10, v11
    v_lshl_add_u32 v8, v12, 2, v8
    v_lshlrev_b32 v8, 7, v8
    v_lshl_add_u32 v8, v9, 3, v8
    s_lshl_b32 s28, s27, 12
    v_add_u32 v8, s28, v8
    s_lshl_b32 s29, s27, 1
    v_xor_b32 v9, s29, v10
    v_lshl_add_u32 v{WA}, v9, 5, v8
    v_xor_b32 v{WA+1}, 64, v{WA}
    v_add_u32 v{WA+2}, 0x10000, v{WA}
    v_add_u32 v{WA+3}, 0x10000, v{WA+1}
    v_add_u32 v{WA+4}, 0x20000, v{WA}
    v_add_u32 v{WA+5}, 0x20000, v{WA+1}
    s_lshl_b32 s29, s26, 1
    v_xor_b32 v9, s29, v10
    v_lshl_add_u32 v9, v9, 5, v8
    v_add_u32 v{HA}, {HTL}, v9
    v_and_b32 v13, 15, v1
    v_mul_u32_u24 v4, {56*1024}, v11
    v_lshl_add_u32 v4, v12, 8, v4
    v_lshl_add_u32 v4, v13, 4, v4
    s_mul_i32 s28, s26, {2*56*1024}
    s_lshl_b32 s29, s27, 11
    s_add_u32 s28, s28, s29
    v_add_u32 v4, s28, v4
    s_mul_i32 s29, s60, {4*56*1024}
    s_add_u32 s29, s29, {hx(ACT)}
    s_add_u32 s40, s14, s29
    s_addc_u32 s41, s15, 0
    s_mov_b32 s42, {4*56*1024}
    s_mov_b32 s43, 0x20000
    v_lshlrev_b32 v13, 4, v1
    s_mul_i32 s28, s26, {XOFF[1] - XOFF[0]}
    s_add_u32 s28, s28, {XOFF[0]}
    s_lshl_b32 s29, s27, 12
    s_add_u32 s32, s28, s29
    v_add_u32 v14, s32, v13
    s_xor_b32 s29, s29, 4096
    s_add_u32 s32, s28, s29
    v_add_u32 v15, s32, v13
    s_lshl_b32 s28, s60, 16
    s_lshl_b32 s29, s26, 15
    s_add_u32 s28, s28, s29
    s_lshl_b32 s29, s61, 7
    s_add_u32 s28, s28, s29
    s_lshl_b32 s29, s27, 6
    s_add_u32 s28, s28, s29
    v_and_b32 v7, 31, v1
    v_lshlrev_b32 v7, 10, v7
    v_lshl_add_u32 v7, v12, 4, v7
    v_add_u32 v7, s28, v7
    """)
    stamp(A)
    A(f"""
    s_cmp_ge_u32 s2, 32
    s_cbranch_scc1 K3_SP5
    s_lshl_b32 s28, s2, 7
    s_add_u32 s28, s28, {hx(FLG + 4096)}
    v_mov_b32 v2, s28
    """)
    A.label("K3_WK")
    A("""
    s_sleep 3
    global_load_dword v3, v2, s[14:15] sc1
    s_waitcnt vmcnt(0)
    v_cmp_eq_u32 vcc, 0, v3
    s_cbranch_vccnz K3_WK
    """)
    A.label("K3_SP5")
    if STAMP: A("s_mov_b32 s66, 0\ns_mov_b32 s67, 0")
    stamp(A)
    def wreads(c):
        sl = SLOT[c]; win = sl // 8
        return [f"ds_read_b64_tr_b16 {v(WF[c%3]+8*j+4*a_+2*kk,2)}, v{WA+2*win+a_} offset:{(sl%8)*8192 + 1024*j + 2048*kk}"
                for j in range(2) for a_ in range(2) for kk in range(2)]
    vq = []
    def aload(c, q=True):
        L = [f"s_mov_b32 s36, {kstep(c, 0) * 1024}"]
        for j in range(2):
            L.append(f"buffer_load_dwordx4 {v(AR+8*(c%NAR)+4*j,4)}, v4, s[40:43], s36 offen offset:{512*j} sc1")
            if q: vq.append(c)
        return L
    def vleft(tag): return len(vq) - 1 - max(k for k, x in enumerate(vq) if x == tag)
    def check(c):
        r = AR + 8 * (c % NAR)
        return [f"v_max3_u32 v8, v{r}, v{r+1}, v{r+2}", f"v_max3_u32 v9, v{r+3}, v{r+4}, v{r+5}",
                f"v_max3_u32 v8, v8, v{r+6}, v{r+7}", "v_max_u32 v8, v8, v9", "v_cmp_eq_u32 vcc, -1, v8"]
    for c in range(LA):
        for l in aload(c): A(l)
    for g in range(4): A(f"ds_read_b64_tr_b16 {v(HH+2*g,2)}, v{HA} offset:{1024*g}")
    for l in wreads(0) + wreads(1): A(l)
    A("s_waitcnt lgkmcnt(15)")
    for k in range(8): A(f"v_lshlrev_b32 v{HU+2*k}, 16, v{HH+k}\nv_and_b32 v{HU+2*k+1}, s37, v{HH+k}")
    stamp(A)
    A(f"s_waitcnt vmcnt({vleft(0)})")
    for l in check(0): A(l)
    A("s_cbranch_vccnz K3_RT0")
    A.label("K3_OK0")
    for c in range(28):
        A(f"s_waitcnt lgkmcnt({8 if c < 27 else 0})")
        if c == 0 or c == 14: stamp(A)
        if c == 0: rec(A, 12)
        if c == 27: rec(A, 14)
        if c in (5, 11, 16): A("s_barrier")
        R_ = wreads(c + 2) if c < 26 else []
        V_ = aload(c + LA) if c + LA < 28 else []
        C_ = [f"s_waitcnt vmcnt({vleft(c + 1)})"] + check(c + 1) if c < 27 else []
        B_ = [f"s_cbranch_vccnz K3_RT{c+1}", f"K3_OK{c+1}:"] if c < 27 else []
        gaps = [V_ + R_[:2], C_, R_[2:5] + B_, R_[5:]]
        m = 0
        for j in range(2):
            for a_ in (1, 0):
                d = v(AC + 16 * a_, 16)
                A(f"v_mfma_f32_32x32x16_bf16 {d}, {v(WF[c%3]+8*j+4*a_,4)}, {v(AR+8*(c%NAR)+4*j,4)}, {'0' if (c == 0 and j == 0) else d}")
                for l in gaps[m]: A(l)
                m += 1
    stamp(A)
    for g in range(4): A(f"ds_write_b128 v15, {v(AC+16+4*g,4)} offset:{1024*g}")
    A("s_waitcnt lgkmcnt(0)\ns_barrier")
    for g in range(4): A(f"ds_read_b128 {v(XR+4*g,4)}, v14 offset:{1024*g}")
    R = 48
    for g in range(4):
        A(f"s_waitcnt lgkmcnt({3-g})")
        for h in range(2): A(f"v_pk_add_f32 {v(AC+4*g+2*h,2)}, {v(AC+4*g+2*h,2)}, {v(XR+4*g+2*h,2)}")
    for q in range(8): A(f"v_cvt_pk_bf16_f32 v{R+q}, v{AC+2*q}, v{AC+2*q+1}")
    for q in range(8): A(f"v_lshlrev_b32 v{AC+2*q}, 16, v{R+q}\nv_and_b32 v{AC+2*q+1}, s37, v{R+q}")
    for q in range(8): A(f"v_pk_add_f32 {v(AC+2*q,2)}, {v(AC+2*q,2)}, {v(HU+2*q,2)}")
    for q in range(8): A(f"v_cvt_pk_bf16_f32 v{R+q}, v{AC+2*q}, v{AC+2*q+1}")
    for i in range(2):
        for h in range(2): A(f"v_permlane32_swap_b32 v{R+4*i+h}, v{R+4*i+2+h}")
        A(f"global_store_dwordx4 v7, {v(R+4*i,4)}, s[18:19] offset:{32*i}")
    if STAMP: A("s_waitcnt vmcnt(0)")
    stamp(A); stamp_rt(A)
    stamp_flush(A, 2, wsreg=14)
    if DIAG2: A("s_waitcnt vmcnt(0)")
    if DIAG2: A("s_memrealtime s[90:91]\ns_waitcnt lgkmcnt(0)\ns_mov_b32 s83, s90")
    d2flush(A, [8, 9, 10, 11, 12, 13, 14], 12, 0)
    mark(A, "end")
    spin_end(A)
    A.label("K3_END")
    A("s_endpgm")
    for lab, back, L1, L2 in retry:
        A.label(lab)
        A("s_sleep 2")
        for l in L1: A(l)
        A("s_waitcnt vmcnt(0)")
        for l in L2: A(l)
        A(f"s_cbranch_vccnz {lab}\ns_branch {back}")
    for c in range(28):
        A.label(f"K3_RT{c}")
        if STAMP: A(f"s_add_u32 s66, s66, 1\ns_mov_b32 s67, {c}")
        A("s_sleep 2")
        for l in aload(c, False): A(l)
        A("s_waitcnt vmcnt(0)")
        for l in check(c): A(l)
        A(f"s_cbranch_vccnz K3_RT{c}\ns_branch K3_OK{c}")
```

```python
from common import *
KNAME = 'sequential_preLN__ssm_conv_s4d__swiglu_ffn__prompt_kernel'

PITCH = 544
BOFF = 41 * PITCH
CHSZ = BOFF + 16 * PITCH
CP = 4160
UOFF = 4 * CP
XOFF = UOFF + 4608 + 64
TOFF = XOFF + 4096 + 16
CVSZ = TOFF + 1536
CVB = 0; CH2 = 129440
EX0, EX1 = 27136, 73728
LNB = 35328; CNT = LNB + 128
KG0, KG1 = 41984, 98304
SHF = 81920; CSP = SHF
assert CVSZ <= EX0 and KG0 + CHSZ <= EX1 and KG1 + CHSZ <= CH2 and CH2 + CVSZ <= 158720
LFL = 0x1106000
WS, DBG = 54, 52

def arrive(A, areg, off):
    A(f"s_mov_b64 exec, 1\nds_add_u32 v{areg}, v{areg+1} offset:{off}\ns_mov_b64 exec, -1")
def await_(A, areg, off, n, tmp, sleep=0):
    l = A.newlabel("SY")
    A.label(l)
    if sleep: A(f"s_sleep {sleep}")
    A(f"""
    ds_read_b32 v{tmp}, v{areg} offset:{off}
    s_waitcnt lgkmcnt(0)
    v_cmp_gt_u32 vcc, {n}, v{tmp}
    s_cbranch_vccnz {l}
    """)

def k12(A):
    kernel_head(A, KNAME)
    diag_start(A)
    A(f"""
    s_load_dwordx16 s[4:19], s[0:1], 0
    s_load_dwordx8 s[44:51], s[0:1], 64
    s_load_dwordx4 s[52:55], s[0:1], 96
    s_memrealtime s[56:57]
    v_lshrrev_b32 v1, 6, v0
    v_readfirstlane_b32 s20, v1
    v_and_b32 v1, 63, v0
    s_cmp_ge_u32 s2, 256
    s_cbranch_scc1 K12_END
    v_lshlrev_b32 v2, 4, v1
    v_mov_b32 v8, 0
    v_mov_b32 v9, 0
    v_mov_b32 v10, 0
    v_mov_b32 v11, 0
    s_mov_b32 s36, 0xffff0000
    """)
    if CODET:
        A(f"""
        s_getpc_b64 s[62:63]
        s_and_b32 s62, s62, 0xffffff00
        s_lshr_b32 s60, s2, 3
        s_lshl_b32 s60, s60, 3
        s_add_u32 s60, s60, s20
        s_lshl_b32 s60, s60, 8
        v_and_b32 v250, 1, v0
        v_lshl_add_u32 v250, v250, 7, s60
        v_min_u32 v250, K3_END-{KNAME}, v250
        global_load_dword v251, v250, s[62:63]
        """)
    A("""
    s_cmp_ge_u32 s20, 4
    s_cbranch_scc1 K12_LN
    """)
    if SPIN: A('s_waitcnt lgkmcnt(0)\ns_mov_b32 s86, s56\ns_mov_b32 s87, s56')
    stamp_reset(); stamp_rt(A); stamp(A)
    LA_, AI_, CR_, CI_, LD_ = 200, 201, 202, 203, 204
    A(f"""
    s_lshr_b32 s21, s20, 1
    s_and_b32 s22, s20, 1
    s_and_b32 s23, s2, 7
    s_lshl_b32 s23, s23, 5
    s_lshr_b32 s24, s2, 3
    s_or_b32 s23, s23, s24
    s_lshl_b32 s23, s23, 1
    s_add_u32 s23, s23, s21
    s_lshl_b32 s24, s23, 8
    v_lshl_add_u32 v6, v1, 2, s24
    s_lshl_b32 s26, s23, 1
    v_mov_b32 v7, s26
    s_mul_i32 s25, s21, {KG1 - KG0}
    s_add_u32 s25, s25, {KG0}
    s_mul_i32 s59, s21, {EX1 - EX0}
    s_add_u32 s59, s59, {EX0}
    s_mul_i32 s27, s21, {CH2}
    s_add_u32 s27, s27, {CVB}
    v_and_b32 v3, 15, v1
    v_lshrrev_b32 v4, 4, v1
    s_waitcnt lgkmcnt(0)
    global_load_dword v{LA_}, v6, s[6:7]
    global_load_ushort v{LD_}, v7, s[14:15]
    global_load_dword v{AI_}, v6, s[8:9]
    global_load_dword v{CR_}, v6, s[10:11]
    global_load_dword v{CI_}, v6, s[12:13]
    global_load_ushort v20, v7, s[16:17]
    """)
    if TLBT:
        sh = {1: 21, 2: 18}[TLBT]
        A(f"""
        v_min_u32 v205, {(0x1160000 >> sh) if TLBT == 1 else 63}, v1
        s_lshl_b32 s26, s20, {sh + 6}
        v_lshl_add_u32 v205, v205, {sh}, {'0' if TLBT == 1 else 's26'}
        v_min_u32 v205, 0x1160000, v205
        v_min_u32 v206, 6, v1
        v_lshlrev_b32 v206, 18, v206
        global_load_dword v207, v205, s[{WS}:{WS+1}]
        global_load_dword v207, v206, s[44:45]
        global_load_dword v207, v206, s[46:47]
        global_load_dword v207, v206, s[48:49]
        global_load_dword v207, v206, s[50:51]
        """)
    A(f"""
    s_barrier
    s_mov_b32 s32, {hx(f2u(L2E_HI))}
    s_mov_b32 s33, {hx(f2u(L2E_LO))}
    s_mov_b32 s34, {hx(f2u(I2P_HI))}
    s_mov_b32 s35, {hx(f2u(I2P_LO))}
    v_lshl_add_u32 v26, v1, 3, s25
    v_mul_u32_u24 v27, {PITCH}, v3
    v_lshl_add_u32 v27, v4, 4, v27
    v_add_u32 v27, s25, v27
    s_lshl_b32 s26, s21, 4
    s_add_u32 s26, s26, {CNT}
    v_mov_b32 v18, s26
    v_mov_b32 v19, 1
    s_add_u32 s28, s27, {TOFF}
    """)
    A(f"""
    s_mul_i32 s29, s22, {CP}
    s_add_u32 s29, s29, s27
    s_lshl_b32 s37, s22, 8
    s_add_u32 s37, s37, s27
    s_add_u32 s37, s37, {UOFF}
    v_add_u32 v6, s37, v2
    s_add_u32 s38, s29, {4096 - 256}
    v_add_u32 v7, s38, v2
    v_cmp_lt_u32 vcc, 15, v1
    v_cndmask_b32 v6, v6, v7, vcc
    v_add_u32 v7, {2*CP - 64}, v7
    v_cmp_lt_u32 vcc, 19, v1
    v_cndmask_b32 v6, v6, v7, vcc
    s_sub_u32 s38, s28, 16
    v_mov_b32 v7, s38
    v_cmp_lt_u32 vcc, 23, v1
    v_cndmask_b32 v6, v6, v7, vcc
    s_mov_b64 exec, 0x1ffffff
    ds_write_b128 v6, v[8:11]
    s_mov_b64 exec, -1
    """)
    AD = 176
    A(f"""
    s_add_u32 s39, s28, {hx(-0x96800000)}
    v_lshlrev_b32 v30, 3, v1
    s_lshl_b32 s38, s22, 10
    """)
    for rnd in range(2):
        A(f"s_sub_u32 s37, {2047 - 512 * rnd}, s38")
        A("v_sub_u32 v31, s37, v30")
        for part in range(2):
            if part == 1: A("v_add_u32 v31, -8, v31\nv_max_i32 v32, 1, v31\nv_ffbh_u32 v32, v32")
            else: A("v_ffbh_u32 v32, v31")
            A("""
            v_sub_u32 v32, 24, v32
            v_max_i32 v32, 0, v32
            v_sub_u32 v33, 127, v32
            v_lshlrev_b32 v33, 23, v33
            v_cvt_f32_i32 v34, v31
            v_mul_f32 v34, v34, v33
            v_lshlrev_b32 v35, 7, v32
            v_add_u32 v35, 0x4b400000, v35
            """)
            es = list(range(8)) if part == 0 else [8, 9, 10]
            for e in es:
                A("v_add_f32 v36, v34, v35")
                A(f"v_lshl_add_u32 v{AD + 11 * rnd + e}, v36, 1, s39")
                if e != es[-1]: A("v_sub_f32 v34, v34, v33")
    A(f"""
    s_lshl_b32 s30, s22, 11
    s_add_u32 s37, s30, s27
    v_add_u32 v21, s37, v2
    v_lshlrev_b32 v5, 5, v3
    v_lshl_add_u32 v5, v4, 3, v5
    s_add_u32 s37, s37, {UOFF + 512}
    v_add_u32 v15, s37, v5
    s_lshl_b32 s37, s22, 6
    s_sub_u32 s38, s27, s37
    s_add_u32 s39, s38, {UOFF + 512 - 13*32}
    v_lshlrev_b32 v12, 5, v3
    v_lshl_add_u32 v12, v4, 4, v12
    v_add_u32 v12, s39, v12
    v_sub_u32 v13, 47, v3
    v_lshl_add_u32 v13, v4, 3, v13
    v_and_b32 v14, 3, v13
    v_and_b32 v13, -4, v13
    v_lshlrev_b32 v13, 1, v13
    v_mul_u32_u24 v14, {CP}, v14
    v_add3_u32 v13, v13, v14, s38
    s_lshl_b32 s37, s22, 12
    s_add_u32 s37, s37, s59
    v_add_u32 v16, s37, v2
    s_xor_b32 s37, s22, 1
    s_lshl_b32 s37, s37, 12
    s_add_u32 s37, s37, s59
    v_add_u32 v17, s37, v2
    s_lshl_b32 s37, s23, 12
    s_add_u32 s37, s37, s30
    s_add_u32 s37, s37, {hx(HT)}
    """)
    addr64(A, 40, WS, "s37")
    A(f"v_mov_b32 v6, {CNT}")
    stamp(A)
    A(f"""
    s_waitcnt vmcnt({(5 if TLBT else 0)})
    v_lshlrev_b32 v42, 16, v{LD_}
    v_lshlrev_b32 v40, 16, v{LA_}
    v_and_b32 v41, s36, v{LA_}
    v_lshlrev_b32 v20, 16, v20
    """)
    stamp(A)
    for i in range(3): A(f"v_mul_f32 v{43+i}, s32, v{40+i}")
    for i in range(3): A(f"v_fma_f32 v{49+i}, v{40+i}, s32, -v{43+i}")
    for i in range(3): A(f"v_exp_f32 v{46+i}, v{43+i}")
    for i in range(3): A(f"v_fma_f32 v{49+i}, v{40+i}, s33, v{49+i}")
    for i in range(3): A(f"v_mul_f32 v{49+i}, {hx(f2u(LN2))}, v{49+i}")
    for i in range(3): A(f"v_fma_f32 v{46+i}, v{46+i}, v{49+i}, v{46+i}")
    A(f"""
    v_and_b32 v52, 0x7fff7fff, v{CR_}
    v_and_b32 v53, 0x7fff7fff, v{CI_}
    v_pk_max_u16 v52, v52, v53
    v_lshrrev_b32 v53, 16, v52
    v_and_b32 v52, 0xffff, v52
    v_max_u32 v52, v52, v53
    v_cvt_pk_bf16_f32 v43, v46, v47
    v_cvt_pk_bf16_f32 v44, v48, v48
    """)
    fill = [f"v_lshlrev_b32 v48, 16, v44", "v_lshlrev_b32 v46, 16, v43", "v_and_b32 v47, s36, v43",
            f"v_lshlrev_b32 v40, 16, v{AI_}", f"v_and_b32 v41, s36, v{AI_}",
            "v_mul_f32 v46, v46, v48", "v_mul_f32 v47, v47, v48", "v_mul_f32 v40, v40, v48", "v_mul_f32 v41, v41, v48",
            "v_mul_f32 v56, s32, v46", "v_mul_f32 v57, s32, v47", "v_mul_f32 v58, s34, v40"]
    for m in ["row_shr:1 row_mask:0xf", "row_shr:2 row_mask:0xf", "row_shr:4 row_mask:0xf", "row_shr:8 row_mask:0xf",
              "row_bcast:15 row_mask:0xa", "row_bcast:31 row_mask:0xc"]:
        A(f"v_max_u32_dpp v52, v52, v52 {m} bank_mask:0xf")
        A(fill.pop(0)); A(fill.pop(0))
    A(f"""
    v_readlane_b32 s30, v52, 63
    v_mul_f32 v59, s34, v41
    v_fma_f32 v60, v40, s34, -v58
    v_fma_f32 v61, v41, s34, -v59
    s_lshr_b32 s30, s30, 7
    s_max_u32 s30, s30, 8
    s_min_u32 s30, s30, 250
    s_sub_u32 s31, 260, s30
    s_lshl_b32 s31, s31, 23
    s_sub_u32 s30, s30, 5
    s_lshl_b32 s30, s30, 23
    v_fma_f32 v60, v40, s35, v60
    v_fma_f32 v61, v41, s35, v61
    v_lshlrev_b32 v64, 16, v{CR_}
    v_and_b32 v65, s36, v{CR_}
    v_lshlrev_b32 v66, 16, v{CI_}
    v_and_b32 v67, s36, v{CI_}
    v_mul_f32 v64, s31, v64
    v_mul_f32 v65, s31, v65
    v_mul_f32 v66, s31, v66
    v_mul_f32 v67, s31, v67
    v_mul_f32 v22, s30, v48
    """)
    def direct(dst, p):
        P = hx(f2u(float(p))); NP = hx(f2u(-float(p)))
        for m in range(2):
            A(f"v_mul_f32 v{43+m}, {NP}, v{56+m}")
            A(f"v_mul_f32 v{45+m}, {P}, v{58+m}")
        for m in range(2):
            A(f"v_exp_f32 v{43+m}, v{43+m}")
            A(f"v_fract_f32 v{45+m}, v{45+m}")
        for m in range(2): A(f"v_fmac_f32 v{45+m}, {P}, v{60+m}")
        for m in range(2):
            A(f"v_cos_f32 v{dst+m}, v{45+m}")
            A(f"v_sin_f32 v{dst+2+m}, v{45+m}")
        for m in range(2):
            A(f"v_mul_f32 v{dst+m}, v{dst+m}, v{43+m}")
            A(f"v_mul_f32 v{dst+2+m}, v{dst+2+m}, v{43+m}")
    tmpc = [0]
    def cmul(d, a, b):
        t = 92 + 4 * (tmpc[0] % 3); tmpc[0] += 1
        A(f"v_pk_mul_f32 {v(t,2)}, {v(a+2,2)}, {v(b+2,2)}")
        A(f"v_pk_mul_f32 {v(t+2,2)}, {v(a+2,2)}, {v(b,2)}")
        A(f"v_pk_fma_f32 {v(d+2,2)}, {v(a,2)}, {v(b+2,2)}, {v(t+2,2)}")
        A(f"v_pk_fma_f32 {v(d,2)}, {v(a,2)}, {v(b,2)}, {v(t,2)} neg_lo:[0,0,1] neg_hi:[0,0,1]")
    emc = [0]
    def emit(src, off, negim):
        c = 104 + 2 * (emc[0] % 4); emc[0] += 1
        n = "-" if negim else ""
        A(f"v_cvt_pk_f16_f32 v{c}, v{src}, v{src+1}")
        A(f"v_cvt_pk_f16_f32 v{c+1}, {n}v{src+2}, {n}v{src+3}")
        A(f"ds_write_b64 v26, {v(c,2)} offset:{off}")
    EA, EB, EC = 68, 72, 76
    P_, Z_ = 80, 84
    X_ = 64
    stamp(A)
    A("s_cmp_eq_u32 s22, 1\ns_cbranch_scc1 K12_H1")
    direct(EA, 8); direct(EB, 1); direct(EC, 128)
    A("v_mov_b32 v104, 0x3c003c00\nv_mov_b32 v105, 0")
    A(f"ds_write_b64 v26, v[104:105] offset:{BOFF}")
    emc[0] = 1
    emit(EA, BOFF + PITCH, False)
    emit(X_, 0, True)
    cmul(Z_, X_, EC); emit(Z_, 8 * PITCH, True)
    j = 2
    for k in range(1, 8):
        cmul(P_, P_ if j > 2 else EA, EA)
        cmul(X_, X_, EB)
        emit(P_, BOFF + j * PITCH, False); j += 1
        emit(X_, k * PITCH, True)
        cmul(P_, P_, EA)
        cmul(Z_, X_, EC)
        emit(P_, BOFF + j * PITCH, False); j += 1
        emit(Z_, (8 + k) * PITCH, True)
    A("s_branch K12_TAB")
    A.label("K12_H1")
    direct(EC, 128); direct(EA, 2); direct(EB, 4)
    Y = X_
    cmul(Y, Y, EC)
    cmul(Y, Y, EC); emit(Y, 16 * PITCH, True)
    cmul(P_, Y, EA)
    cmul(Y, Y, EC)
    emit(P_, 17 * PITCH, True); emit(Y, 20 * PITCH, True)
    cmul(P_, P_, EA); cmul(Z_, Y, EA); cmul(Y, Y, EC)
    emit(P_, 18 * PITCH, True); emit(Z_, 21 * PITCH, True); emit(Y, 24 * PITCH, True)
    cmul(P_, P_, EA); cmul(Z_, Z_, EA)
    emit(P_, 19 * PITCH, True); emit(Z_, 22 * PITCH, True)
    cmul(P_, Y, EB); cmul(Z_, Z_, EA); cmul(Y, Y, EC)
    emit(P_, 25 * PITCH, True); emit(Z_, 23 * PITCH, True); emit(Y, 26 * PITCH, True)
    for i in (5, 6, 7):
        cmul(P_, Y, EB); cmul(Y, Y, EC)
        emit(P_, (24 + 2 * (i - 4) + 1) * PITCH, True)
        emit(Y, (24 + 2 * (i + 1 - 4)) * PITCH, True)
    for i in range(9, 17):
        cmul(Y, Y, EC); emit(Y, (32 + i - 8) * PITCH, True)
    A.label("K12_TAB")
    arrive(A, 18, 0)
    stamp(A)
    await_(A, 18, 0, 2, 40)
    stamp(A)
    for ks in range(8): A(f"ds_read_b128 {v(64+4*ks,4)}, v27 offset:{BOFF + 64*ks}")
    A("s_cmp_eq_u32 s22, 0\ns_cbranch_scc1 K12_T2")
    for ks in range(8): A(f"ds_read_b128 {v(96+4*ks,4)}, v27 offset:{64*ks}")
    for ks in range(8): A(f"ds_read_b128 {v(128+4*ks,4)}, v27 offset:{16*PITCH + 64*ks}")
    A(f"""
    v_lshrrev_b32 v32, 1, v4
    v_and_b32 v33, 1, v4
    v_lshlrev_b32 v34, 8, v32
    v_lshl_add_u32 v34, v33, 3, v34
    v_lshl_add_u32 v34, v3, 4, v34
    v_add_u32 v34, s28, v34
    v_sub_u32 v35, 3, v32
    v_lshlrev_b32 v35, v35, v3
    v_lshl_add_u32 v35, v4, 7, v35
    v_add_u32 v35, s28, v35
    v_mul_u32_u24 v36, 60, v32
    v_add3_u32 v36, v35, v36, 4
    """)
    A("s_waitcnt lgkmcnt(8)")
    for ks in range(8):
        A(f"v_mfma_f32_16x16x32_f16 v[40:43], {v(96+4*ks,4)}, {v(64+4*ks,4)}, {'0' if ks == 0 else 'v[40:43]'}")
    A("s_waitcnt lgkmcnt(0)")
    for ks in range(8):
        A(f"v_mfma_f32_16x16x32_f16 v[44:47], {v(128+4*ks,4)}, {v(64+4*ks,4)}, {'0' if ks == 0 else 'v[44:47]'}")
    A(f"""
    v_cvt_pk_f16_f32 v48, v40, v41
    v_cvt_pk_f16_f32 v49, v42, v43
    ds_write_b64 v34, v[48:49]
    v_cvt_pk_f16_f32 v50, v44, v45
    v_cvt_pk_f16_f32 v51, v46, v47
    ds_write_b32 v35, v50 offset:512
    ds_write_b32 v36, v51 offset:512
    s_branch K12_EXP
    """)
    A.label("K12_T2")
    for ks in range(8): A(f"ds_read_b128 {v(96+4*ks,4)}, v27 offset:{32*PITCH + 64*ks}")
    A(f"""
    v_lshlrev_b32 v34, 7, v4
    v_lshl_add_u32 v34, v3, 1, v34
    v_add_u32 v34, s28, v34
    s_waitcnt lgkmcnt(0)
    """)
    for ks in range(8):
        A(f"v_mfma_f32_16x16x32_f16 v[40:43], {v(96+4*ks,4)}, {v(64+4*ks,4)}, {'0' if ks == 0 else 'v[40:43]'}")
    A(f"""
    v_cvt_pk_f16_f32 v48, v40, v41
    v_cvt_pk_f16_f32 v49, v42, v43
    ds_write_b16 v34, v48 offset:1024
    ds_write_b16_d16_hi v34, v48 offset:1056
    ds_write_b16 v34, v49 offset:1088
    ds_write_b16_d16_hi v34, v49 offset:1120
    """)
    A.label("K12_EXP")
    arrive(A, 18, 4)
    await_(A, 18, 4, 2, 40)
    stamp(A)
    E = 112; PK = 136
    for rnd in range(2):
        for e in range(11): A(f"ds_read_u16 v{E + 12*rnd + e}, v{AD + 11*rnd + e}")
    for rnd in range(2):
        A(f"s_waitcnt lgkmcnt({11 if rnd == 0 else 4})")
        for s_ in range(4):
            d = PK + 16 * rnd + 4 * s_
            for k in range(4):
                A(f"v_lshl_or_b32 v{d+k}, v{E+12*rnd+s_+2*k+1}, 16, v{E+12*rnd+s_+2*k}")
            A(f"ds_write_b128 v21, {v(d,4)} offset:{s_*CP + 1024*rnd}")
    A("s_waitcnt lgkmcnt(0)")
    stamp(A)
    if DIAG2: A("s_memrealtime s[90:91]\ns_waitcnt lgkmcnt(0)\ns_mov_b32 s76, s90")
    A("s_barrier")
    mark(A, "bm")
    stamp(A)
    ACC = 24; AF = 56; BF = 88; UU = 216; W = 240; T = 224; X = 232
    def group_reads(g):
        L = []
        for ii in range(4):
            k = 4 * (7 - g) + 3 - ii
            L.append(("B", k)); L.append(("A0", 4*g+ii)); L.append(("A1", 4*g+ii))
        return L
    def do_read(x):
        kind, i = x
        if kind == "B": A(f"ds_read_b128 {v(BF+4*i,4)}, v12 offset:{128*i}")
        elif kind == "U": A(f"ds_read_b64 {v(UU+2*i,2)}, v15 offset:{512*i}")
        elif kind == "X": A(f"ds_read_b64 {v(X+2*i,2)}, v15 offset:{XOFF - UOFF - 512 + 512*i}")
        else:
            a = AF + 4 * (i % 8); h = 0 if kind == "A0" else 1
            A(f"ds_read_b64 {v(a+2*h,2)}, v13 offset:{(31-i)*128+8*h}")
    for x in group_reads(7): do_read(x)
    started = set()
    filler = []
    for t in range(4):
        for h in range(2):
            u = UU + 2 * t + h
            filler += [f"v_cvt_f32_f16 v{T}, v{u}",
                       f"v_cvt_f32_f16_sdwa v{T+1}, v{u} dst_sel:DWORD dst_unused:UNUSED_PAD src0_sel:WORD_1",
                       f"v_mul_f32 v{T}, v20, v{T}", f"v_mul_f32 v{T+1}, v20, v{T+1}",
                       f"v_cvt_pk_bf16_f32 v{W+2*t+h}, v{T}, v{T+1}"]
    for g in range(7, -1, -1):
        nxt = group_reads(g - 1) if g > 0 else []
        if g == 2: nxt = nxt + [("U", t) for t in range(4)]
        if g == 3: nxt = nxt + [("X", t) for t in range(4)]
        issued = 0; nm = 4 * (8 - g); m = 0
        for ii in range(4):
            i = 4 * g + ii
            extra = 4 if g in (1, 2) else 0
            A(f"s_waitcnt lgkmcnt({min(15, (3-ii)*3 + extra + issued)})")
            for t in range(7, g - 1, -1):
                k = 4 * (t - g) + 3 - ii
                c = v(ACC+4*t,4) if t in started else "0"
                started.add(t)
                A(f"v_mfma_f32_16x16x32_f16 {v(ACC+4*t,4)}, {v(AF+4*(i%8),4)}, {v(BF+4*k,4)}, {c}")
                m += 1
                want = min(len(nxt), (m * len(nxt) + nm - 1) // nm) if g < 7 else min(len(nxt), 3 * m)
                while issued < want:
                    do_read(nxt[issued]); issued += 1
                if g == 0 and filler:
                    A(filler.pop(0))
                    if m % 4 == 0 and filler: A(filler.pop(0))
    assert not filler
    stamp(A)
    A("s_cmp_eq_u32 s22, 1\ns_cbranch_scc1 K12_X1")
    R = 56; Q = 88; Q2 = 104
    for pi in range(2):
        if pi: A.label("K12_X1")
        for t in (3, 2, 1, 0): A(f"ds_write_b128 v16, {v(ACC+16*(1-pi)+4*t,4)} offset:{1024*t}")
        arrive(A, 18, 8)
        for p in range(8):
            A(f"v_lshlrev_b32 v{Q+2*p}, 16, v{W+p}\nv_and_b32 v{Q+2*p+1}, s36, v{W+p}")
            A(f"v_lshlrev_b32 v{Q2+2*p}, 16, v{X+p}\nv_and_b32 v{Q2+2*p+1}, s36, v{X+p}")
        await_(A, 18, 8, 2, T)
        for t in range(4): A(f"ds_read_b128 {v(R+4*t,4)}, v17 offset:{1024*t}")
        for t in range(4):
            A(f"s_waitcnt lgkmcnt({3-t})")
            for h in range(2): A(f"v_pk_add_f32 {v(R+4*t+2*h,2)}, {v(R+4*t+2*h,2)}, {v(ACC+16*pi+4*t+2*h,2)}")
        if not pi: A("s_branch K12_EPI")
    A.label("K12_EPI")
    stamp(A)
    P = 24
    for p in range(8): A(f"v_pk_mul_f32 {v(R+2*p,2)}, {v(R+2*p,2)}, v[22:23] op_sel_hi:[1,0]")
    for p in range(8): A(f"v_cvt_pk_bf16_f32 v{P+p}, v{R+2*p}, v{R+2*p+1}")
    for p in range(8): A(f"v_lshlrev_b32 v{R+2*p}, 16, v{P+p}\nv_and_b32 v{R+2*p+1}, s36, v{P+p}")
    for p in range(8): A(f"v_pk_add_f32 {v(R+2*p,2)}, {v(R+2*p,2)}, {v(Q+2*p,2)}")
    for p in range(8): A(f"v_cvt_pk_bf16_f32 v{P+p}, v{R+2*p}, v{R+2*p+1}")
    for p in range(8): A(f"v_lshlrev_b32 v{R+2*p}, 16, v{P+p}\nv_and_b32 v{R+2*p+1}, s36, v{P+p}")
    for p in range(8): A(f"v_pk_add_f32 {v(R+2*p,2)}, {v(R+2*p,2)}, {v(Q2+2*p,2)}")
    for p in range(8): A(f"v_cvt_pk_bf16_f32 v{P+p}, v{R+2*p}, v{R+2*p+1}")
    for p in range(0, 8, 2): A(f"v_min_u32 v{P+p}, -2, v{P+p}")
    await_(A, 6, 40, 4, T)
    for t in range(4): A(f"global_store_dwordx2 v5, {v(P+2*t,2)}, s[40:41] offset:{512*t} sc1")
    stamp(A); stamp(A); stamp_rt(A); stamp_flush(A, 0, wsreg=WS)
    rec(A, 7)
    mark(A, "ce")
    d2flush(A, [6, 7], DBG, 64)
    A("s_branch FFN_ENTRY")

    A.label("K12_LN")
    stamp_reset(); stamp_rt(A); stamp(A)
    A(f"""
    s_setprio 1
    s_sub_u32 s58, s20, 4
    v_and_b32 v0, 255, v0
    v_add_u32 v6, {CNT}, v2
    s_mov_b64 exec, 15
    ds_write_b128 v6, v[8:11]
    s_mov_b64 exec, -1
    s_and_b32 s23, s2, 7
    s_lshl_b32 s21, s23, 5
    s_lshr_b32 s26, s2, 3
    s_or_b32 s21, s21, s26
    s_lshl_b32 s24, s21, 13
    s_lshl_b32 s25, s58, 11
    s_add_u32 s25, s25, s24
    v_add_u32 v4, s25, v2
    s_add_u32 s24, s24, 4096
    v_lshl_add_u32 v3, v0, 2, s24
    s_min_u32 s27, s26, 27
    s_cmp_ge_u32 s27, 14
    s_cselect_b32 s28, 14, 0
    s_sub_u32 s28, s27, s28
    s_lshl_b32 s28, s28, 8
    s_lshl_b32 s29, s23, 2
    s_add_u32 s29, s29, s58
    s_mul_i32 s29, s29, {16*3584}
    s_add_u32 s28, s28, s29
    v_lshrrev_b32 v7, 4, v1
    v_and_b32 v96, 15, v1
    v_mul_u32_u24 v7, 3584, v7
    v_lshl_add_u32 v7, v96, 4, v7
    v_add_u32 v7, s28, v7
    v_mov_b32 v128, 0
    s_add_u32 s30, s2, s58
    s_waitcnt lgkmcnt(0)
    s_cmp_lg_u32 s30, 0
    s_cbranch_scc1 K12_NN
    s_or_b32 s56, s56, 1
    v_mov_b32 v130, s56
    v_mov_b32 v131, s57
    s_mov_b64 exec, 1
    global_store_dwordx2 v128, v[130:131], s[{DBG}:{DBG+1}] sc1
    s_mov_b64 exec, -1
    """)
    A.label("K12_NN")
    A(f"""
    global_load_dwordx4 v[16:19], v4, s[4:5]
    global_load_dwordx4 v[20:23], v4, s[4:5] offset:1024
    """)
    XR = 136
    for r in range(8): A(f"global_load_dword v{XR+r}, v3, s[4:5] offset:{(r-4)*1024}")
    A(f"""
    s_barrier
    """)
    A("""
    s_cmp_ge_u32 s27, 14
    s_cselect_b32 s40, s46, s44
    s_cselect_b32 s41, s47, s45
    """)
    A(f"""
    s_lshl_b32 s30, s21, 13
    s_lshl_b32 s31, s58, 11
    s_add_u32 s30, s30, s31
    s_add_u32 s30, s30, {hx(HT)}
    v_add_u32 v164, s30, v2
    v_mov_b32 v160, -1
    v_mov_b32 v161, -1
    v_mov_b32 v162, -1
    v_mov_b32 v163, -1
    global_store_dwordx4 v164, v[160:163], s[{WS}:{WS+1}] sc1
    global_store_dwordx4 v164, v[160:163], s[{WS}:{WS+1}] offset:1024 sc1
    s_cmp_ge_u32 s2, 16
    s_cbranch_scc1 K12_NZ
    s_lshl_b32 s30, s2, 2
    s_add_u32 s30, s30, s58
    s_lshl_b32 s30, s30, 7
    s_add_u32 s30, s30, {hx(FLG)}
    v_add_u32 v165, s30, v2
    s_mov_b64 exec, 0xff
    global_store_dwordx4 v165, v[8:11], s[{WS}:{WS+1}] sc1
    s_mov_b64 exec, -1
K12_NZ:
    """)
    WL = 104
    for j in range(4):
        A(f"global_load_dwordx4 {v(WL+4*j,4)}, v7, s[40:41]")
        if j < 3: A(f"v_add_u32 v7, {4*3584}, v7")
    A(f"""
    s_lshl_b32 s30, s26, 2
    s_add_u32 s30, s30, s58
    s_cmp_ge_u32 s30, 64
    s_cselect_b32 s42, s46, s44
    s_cselect_b32 s43, s47, s45
    s_and_b32 s31, s30, 63
    s_mul_i32 s31, s31, {4*3584}
    s_and_b32 s32, s2, 1
    s_mul_i32 s33, s32, 1792
    s_add_u32 s31, s31, s33
    v_min_u32 v30, 55, v1
    v_mul_u32_u24 v31, 4682, v30
    v_lshrrev_b32 v31, 16, v31
    v_mul_u32_u24 v32, 14, v31
    v_sub_u32 v32, v30, v32
    v_mul_u32_u24 v31, 3584, v31
    v_lshl_add_u32 v31, v32, 7, v31
    v_add_u32 v152, s31, v31
    v_add_u32 v153, {256*3584}, v152
    s_mul_i32 s30, s30, {14*1024}
    s_lshl_b32 s32, s32, 9
    s_add_u32 s30, s30, s32
    v_lshrrev_b32 v30, 2, v1
    v_min_u32 v30, 13, v30
    v_and_b32 v31, 3, v1
    v_lshlrev_b32 v30, 10, v30
    v_lshl_add_u32 v30, v31, 7, v30
    v_add_u32 v154, s30, v30
    v_xor_b32 v155, 512, v154
    """)
    def clears():
        A(f"""
        s_lshl_b32 s30, s2, 2
        s_add_u32 s30, s30, s58
        s_mul_i32 s30, s30, 7168
        s_add_u32 s30, s30, {hx(ACT + 4096)}
        v_add_u32 v33, s30, v2
        v_mov_b32 v36, -1
        v_mov_b32 v37, -1
        v_mov_b32 v38, -1
        v_mov_b32 v39, -1
        """)
        for k in range(7): A(f"global_store_dwordx4 v33, v[36:39], s[{WS}:{WS+1}] offset:{1024*k - 4096} sc1")
    def touchW(): A("global_load_dword v156, v152, s[42:43]\nglobal_load_dword v157, v153, s[42:43]")
    def touchD():
        A("global_load_dword v156, v154, s[48:49]")
        if P2MAP == 0: A("global_load_dword v157, v155, s[48:49]")
    def touchV(): A("global_load_dword v156, v152, s[42:43]")
    def touchM():
        A(f"""
        s_lshl_b32 s30, s2, 2
        s_add_u32 s30, s30, s58
        s_mul_i32 s30, s30, {14*128}
        v_min_u32 v158, 13, v1
        v_lshl_add_u32 v158, v158, 7, s30
        global_load_dword v157, v158, s[48:49]
        """)
    jobs = {"c": clears, "w": touchW, "d": touchD, "v": touchV, "m": touchM}
    NJ = {"c": 7, "w": 2, "d": 2 - P2MAP, "v": 1, "m": 1}
    n0 = 4
    for ch in SLOT0: jobs[ch](); n0 += NJ[ch]
    ct = 0
    A(f"""
    s_mov_b32 s38, 0x05040100
    s_mov_b32 s39, 0x07060302
    s_lshl_b32 s30, s58, 5
    s_add_u32 s30, s30, {LNB}
    v_mov_b32 v5, s30
    v_mov_b32 v6, {LNB}
    v_mov_b32 v12, {CNT}
    v_mov_b32 v13, 1
    s_lshl_b32 s30, s58, 12
    s_add_u32 s30, s30, {SHF}
    v_lshl_add_u32 v97, v1, 6, s30
    v_bfe_u32 v98, v1, 1, 2
    v_add_u32 v99, s30, v2
    """)
    for j in range(4):
        A(f"v_xor_b32 v{120+j}, {j}, v98\nv_lshl_add_u32 v{120+j}, v{120+j}, 4, v97")
    A(f"""
    v_lshrrev_b32 v3, 2, v1
    v_lshlrev_b32 v3, 14, v3
    v_and_b32 v97, 3, v1
    v_bfe_u32 v98, v1, 3, 2
    v_xor_b32 v97, v97, v98
    v_lshl_add_u32 v3, v97, 4, v3
    s_lshl_b32 s30, s58, 20
    s_lshl_b32 s31, s21, 6
    s_add_u32 s30, s30, s31
    """)
    addr64(A, 60, WS, "s30")
    A("v_add_u32 v124, 0x40000, v3\nv_add_u32 v125, 0x80000, v3\nv_add_u32 v126, 0xc0000, v3")
    stamp(A)
    if DIAG2: A("s_mov_b32 s70, s56")
    A(f"s_waitcnt vmcnt({10 + n0})")
    A(f"s_load_dwordx2 s[12:13], s[{DBG}:{DBG+1}], 0")
    if DIAG2: A("s_memrealtime s[90:91]\ns_waitcnt lgkmcnt(0)\ns_mov_b32 s71, s90")
    stamp(A)
    for row in range(2):
        for k in range(4):
            A(f"v_lshlrev_b32 v{24+8*row+2*k}, 16, v{16+4*row+k}")
            A(f"v_and_b32 v{24+8*row+2*k+1}, s36, v{16+4*row+k}")
    for row in range(2):
        b = 24 + 8 * row; t = 40 + 4 * row; q = 48 + 4 * row
        A(f"v_pk_add_f32 {v(t,2)}, {v(b,2)}, {v(b+2,2)}")
        A(f"v_pk_add_f32 {v(t+2,2)}, {v(b+4,2)}, {v(b+6,2)}")
        A(f"v_pk_mul_f32 {v(q,2)}, {v(b,2)}, {v(b,2)}")
        A(f"v_pk_mul_f32 {v(q+2,2)}, {v(b+2,2)}, {v(b+2,2)}")
    for row in range(2):
        b = 24 + 8 * row; t = 40 + 4 * row; q = 48 + 4 * row
        A(f"v_pk_add_f32 {v(t,2)}, {v(t,2)}, {v(t+2,2)}")
        A(f"v_pk_fma_f32 {v(q,2)}, {v(b+4,2)}, {v(b+4,2)}, {v(q,2)}")
        A(f"v_pk_fma_f32 {v(q+2,2)}, {v(b+6,2)}, {v(b+6,2)}, {v(q+2,2)}")
    for row in range(2):
        t = 40 + 4 * row; q = 48 + 4 * row
        A(f"v_add_f32 v{t}, v{t}, v{t+1}")
        A(f"v_pk_add_f32 {v(q,2)}, {v(q,2)}, {v(q+2,2)}")
    for row in range(2):
        q = 48 + 4 * row
        A(f"v_add_f32 v{q}, v{q}, v{q+1}")
    dpp_reduce(A, "v_add_f32", [40, 44, 48, 52])
    def both(f):
        for row in range(2): A(f(40 + 4 * row, 48 + 4 * row))
    both(lambda m, t: f"v_mul_f32 v{m}, {hx(f2u(1/512))}, v{m}\nv_mul_f32 v{t}, {hx(f2u(1/512))}, v{t}")
    both(lambda m, t: f"v_fma_f32 v{t}, -v{m}, v{m}, v{t}")
    both(lambda m, t: f"v_max_f32 v{t}, 0, v{t}")
    both(lambda m, t: f"v_cvt_pk_bf16_f32 v{t}, v{m}, v{t}")
    both(lambda m, t: f"v_lshlrev_b32 v{m}, 16, v{t}\nv_and_b32 v{t}, s36, v{t}")
    both(lambda m, t: f"v_add_f32 v{t}, {hx(f2u(1e-5))}, v{t}")
    both(lambda m, t: f"v_cvt_pk_bf16_f32 v{t}, v{t}, v{t}")
    both(lambda m, t: f"v_lshlrev_b32 v{t}, 16, v{t}")
    both(lambda m, t: f"v_sqrt_f32 v{t}, v{t}")
    both(lambda m, t: f"v_cvt_pk_bf16_f32 v{t}, v{t}, v{t}")
    both(lambda m, t: f"v_lshlrev_b32 v{m+1}, 16, v{t}")
    both(lambda m, t: f"v_rcp_f32 v{m+2}, v{m+1}")
    A(f"s_waitcnt vmcnt({n0})")
    A("""
    s_mov_b32 exec_lo, 0
    s_mov_b32 exec_hi, 0x80000000
    ds_write_b128 v5, v[40:43]
    ds_write_b128 v5, v[44:47] offset:16
    ds_add_u32 v12, v13 offset:32
    s_mov_b64 exec, -1
    """)
    stamp(A)
    A(f"s_waitcnt vmcnt({n0})")
    for k in range(4):
        A(f"v_perm_b32 v{56+k}, v{XR+1+2*k}, v{XR+2*k}, s38")
        A(f"v_perm_b32 v{60+k}, v{XR+1+2*k}, v{XR+2*k}, s39")
    A("ds_write_b128 v122, v[56:59]\nds_write_b128 v123, v[60:63]")
    U = 24
    for r in range(8):
        A(f"v_lshlrev_b32 v{U+2*r}, 16, v{XR+r}")
        A(f"v_and_b32 v{U+2*r+1}, s36, v{XR+r}")
    await_(A, 12, 32, 4, 14)
    stamp(A)
    ST = 64
    for r in range(8): A(f"ds_read_b128 {v(ST+4*r,4)}, v6 offset:{16*r}")
    for r in range(8):
        A(f"s_waitcnt lgkmcnt({7-r})")
        A(f"v_pk_add_f32 {v(U+2*r,2)}, {v(U+2*r,2)}, {v(ST+4*r,2)} op_sel_hi:[1,0] neg_lo:[0,1] neg_hi:[0,1]")
    for r in range(8): A(f"v_cvt_pk_bf16_f32 v{XR+r}, v{U+2*r}, v{U+2*r+1}")
    for r in range(8):
        A(f"v_lshlrev_b32 v{U+2*r}, 16, v{XR+r}")
        A(f"v_and_b32 v{U+2*r+1}, s36, v{XR+r}")
    TG = 4
    A.label("K12_NW")
    A(f"""
    s_cmp_lg_u32 s12, 0
    s_cbranch_scc1 K12_NOK
    global_load_dwordx2 v[130:131], v128, s[{DBG}:{DBG+1}] sc1
    s_waitcnt vmcnt(0)
    v_readfirstlane_b32 s12, v130
    v_readfirstlane_b32 s13, v131
    s_branch K12_NW
    """)
    A.label("K12_NOK")
    A("""
    s_lshr_b64 s[14:15], s[12:13], 24
    s_mul_i32 s15, s12, 0x9e3779b1
    s_xor_b32 s13, s14, s15
    v_mov_b32 v132, 0x70007
    """)
    for h in range(2):
        for k in range(4):
            A(f"""
            s_bfe_u32 s14, s{12+h}, {hx((3 << 16) | (6*k))}
            s_bfe_u32 s15, s{12+h}, {hx((3 << 16) | (6*k+3))}
            s_lshl_b32 s15, s15, 16
            s_or_b32 s{TG+4*h+k}, s14, s15
            """)
    for k in range(8): A(f"v_xor_b32 v{56+k}, s{TG+k}, v{56+k}")
    Q = 40
    for r in range(8): A(f"v_pk_mul_f32 {v(Q+2*r,2)}, {v(U+2*r,2)}, {v(ST+4*r+2,2)} op_sel_hi:[1,0]")
    for r in range(8): A(f"v_pk_fma_f32 {v(U+2*r,2)}, {v(Q+2*r,2)}, {v(ST+4*r,2)}, {v(U+2*r,2)} op_sel:[0,1,0] op_sel_hi:[1,1,1] neg_lo:[1,0,0] neg_hi:[1,0,0]")
    for r in range(8): A(f"v_pk_fma_f32 {v(Q+2*r,2)}, {v(U+2*r,2)}, {v(ST+4*r+2,2)}, {v(Q+2*r,2)} op_sel_hi:[1,0,1]")
    for r in range(8): A(f"v_cvt_pk_bf16_f32 v{XR+r}, v{Q+2*r}, v{Q+2*r+1}")
    for r in range(8):
        A(f"v_lshlrev_b32 v{U+2*r}, 16, v{XR+r}")
        A(f"v_and_b32 v{U+2*r+1}, s36, v{XR+r}")
    for k in range(4): A(f"v_cvt_pk_f16_f32 v{16+k}, v{U+4*k}, v{U+4*k+2}")
    for k in range(4): A(f"v_cvt_pk_f16_f32 v{20+k}, v{U+4*k+1}, v{U+4*k+3}")
    for k in range(8): A(f"v_bfi_b32 v{16+k}, v132, v{56+k}, v{16+k}")
    A("ds_write_b128 v120, v[16:19]\nds_write_b128 v121, v[20:23]")
    for k in range(4): A(f"ds_read_b128 {v(40+4*k,4)}, v99 offset:{1024*k}")
    for k in range(4):
        A(f"s_waitcnt lgkmcnt({3-k})")
        A(f"global_store_dwordx4 v{[3,124,125,126][k]}, {v(40+4*k,4)}, s[60:61] sc1")
    stamp(A)
    A("s_setprio 0")
    n1 = 0
    for ch in SLOT1: jobs[ch](); n1 += NJ[ch]
    rec(A, 2)
    stamp(A)
    A(f"""
    s_lshl_b32 s30, s21, 14
    s_lshl_b32 s31, s58, 12
    s_add_u32 s30, s30, s31
    v_add_u32 v17, s30, v2
    v_and_b32 v18, 1, v1
    v_cmp_eq_u32 vcc, 1, v18
    v_mul_u32_u24 v18, {CH2}, v18
    v_bfe_u32 v19, v1, 1, 1
    v_mul_u32_u24 v19, {XOFF - UOFF - 512}, v19
    v_lshrrev_b32 v20, 2, v1
    v_lshlrev_b32 v20, 4, v20
    s_lshl_b32 s30, s58, 10
    s_add_u32 s30, s30, {CVB + UOFF + 512}
    v_add3_u32 v18, v18, v19, v20
    v_add_u32 v18, s30, v18
    v_mov_b32 v56, s4
    v_mov_b32 v57, s5
    v_mov_b32 v58, s6
    v_mov_b32 v59, s7
    v_mov_b32 v60, s8
    v_mov_b32 v61, s9
    v_mov_b32 v62, s10
    v_mov_b32 v63, s11
    v_cndmask_b32 v56, v56, v60, vcc
    v_cndmask_b32 v57, v57, v61, vcc
    v_cndmask_b32 v58, v58, v62, vcc
    v_cndmask_b32 v59, v59, v63, vcc
    v_cmp_eq_u32 vcc, 0, v19
    v_cndmask_b32 v60, 0, v132, vcc
    v_not_b32 v61, v60
    """)
    if POLLW:
        await_(A, 12, 4, 2, 14, 1) if POLLW == 2 else await_(A, 12, 0, 2, 14, 1)
    stamp(A)
    if DIAG2: A("s_memrealtime s[90:91]\ns_waitcnt lgkmcnt(0)\ns_mov_b32 s73, s90")
    A.label("K12_PL")
    for k in range(4): A(f"global_load_dwordx4 {v(64+4*k,4)}, v17, s[{WS}:{WS+1}] offset:{1024*k} sc1")
    for k in range(4):
        A(f"s_waitcnt vmcnt({3-k})")
        for i in range(4): A(f"v_xor_b32_dpp v{80+i}, v{64+4*k+i}, v{64+4*k+i} quad_perm:[2,3,2,3] row_mask:0xf bank_mask:0xf")
        for i in range(4): A(f"v_and_b32 v{64+4*k+i}, v61, v{64+4*k+i}")
        A(f"ds_write_b128 v18, {v(64+4*k,4)} offset:{256*k}")
        for i in range(4): A(f"v_xor_b32 v{80+i}, v{80+i}, v{56+i}")
        A(f"v_or3_b32 v48, v80, v81, {'0' if k == 0 else 'v48'}")
        A("v_or3_b32 v48, v82, v83, v48")
    A(f"""
    v_and_b32 v48, v48, v60
    v_cmp_ne_u32 vcc, 0, v48
    s_cbranch_vccz K12_GO
    s_sleep 2
    s_branch K12_PL
    """)
    A.label("K12_GO")
    rec(A, 4)
    stamp(A)
    A("s_waitcnt lgkmcnt(0)")
    stamp(A)
    A("s_barrier")
    rec(A, 5)
    for ch in SLOT2: jobs[ch]()
    for j in range(4):
        for k in range(4):
            d = 64 + 8 * j + 2 * k
            A(f"v_lshlrev_b32 v{d}, 16, v{WL+4*j+k}\nv_and_b32 v{d+1}, s36, v{WL+4*j+k}")
    for st in (16, 8):
        for i in range(st): A(f"v_add_f32 v{64+i}, v{64+i}, v{64+st+i}")
    A(f"""
    v_lshlrev_b32 v7, 5, v0
    v_add_u32 v7, {CSP}, v7
    ds_write_b128 v7, v[64:67]
    ds_write_b128 v7, v[68:71] offset:16
    s_mov_b64 exec, 1
    ds_add_rtn_u32 v14, v12, v13 offset:36
    s_mov_b64 exec, -1
    s_waitcnt lgkmcnt(0)
    v_readfirstlane_b32 s30, v14
    """)
    A(f"""
    s_cmp_lg_u32 s30, 3
    s_cbranch_scc1 K12_NCS
    v_lshlrev_b32 v7, 3, v1
    v_add_u32 v15, {CSP}, v7
    s_mul_i32 s30, s23, {3584*4}
    s_lshl_b32 s31, s27, 9
    s_add_u32 s30, s30, s31
    s_add_u32 s30, s30, {hx(CSUM)}
    v_add_u32 v7, s30, v7
    """)
    for p_ in range(16): A(f"ds_read_b64 {v(64+2*p_,2)}, v15 offset:{512*p_}")
    A("s_waitcnt lgkmcnt(0)")
    for st in (16, 8, 4, 2):
        for i in range(st): A(f"v_add_f32 v{64+i}, v{64+i}, v{64+st+i}")
    A(f"global_store_dwordx2 v7, v[64:65], s[{WS}:{WS+1}] sc1")
    A.label("K12_NCS")
    A.label("K12_LE")
    A("s_waitcnt vmcnt(0)")
    arrive(A, 12, 40)
    for ch in SLOT3: jobs[ch]()
    if DIAG2: A("s_mov_b32 s85, s12")
    d2flush(A, [0, 1, 2, 3, 4, 5, 15], DBG, 64)
    stamp(A); stamp_rt(A); stamp_flush(A, 0, wsreg=WS)
    A("s_branch FFN_ENTRY")
    A.label("K12_END")
    A("s_endpgm")

HT_ST = os.environ.get('HT_ST', '')
POLLW = int(os.environ.get('POLLW', '2'))
TLBT = int(os.environ.get('TLBT', '0'))
CODET = int(os.environ.get('CODET', '1'))
SLOT0 = os.environ.get('SLOT0', '')
SLOT1 = os.environ.get('SLOT1', '')
SLOT2 = os.environ.get('SLOT2', 'c')
SLOT3 = os.environ.get('SLOT3', '')
```

```python
import sys
from common import *
import ssm, ffn
HDR = open("sequential_preLN__ssm_conv_s4d__swiglu_ffn__prompt.s.ref").read().split("; Override")[0]
def main(out):
    A = Asm()
    ssm.k12(A); ffn.k3(A)
    txt = HDR
    txt += f"; @launch grid=(256,1,1) block=(512,1,1) lds={ffn.K3_LDS}\n"
    txt += '.amdgcn_target "amdgcn-amd-amdhsa--gfx950"\n.text\n'
    txt += A.finish()
    txt += '.section .rodata,"a"\n'
    txt += kernel_desc(ssm.KNAME, 256)
    open(out, "w").write(txt)
main(sys.argv[1])
```
